```python
import torch

def _softmax(x, axis=-1):
    return torch.softmax(x, dim=axis)

def _gelu(x):
    return torch.nn.functional.gelu(x, approximate='tanh')

def _silu(x):
    return torch.nn.functional.silu(x)

def _sigmoid(x):
    return torch.sigmoid(x)

def _layernorm(x, axis=-1, eps=1e-05):
    m = x.mean(dim=axis, keepdim=True)
    v = x.var(dim=axis, keepdim=True, unbiased=False)
    return (x - m) / torch.sqrt(v + eps)

def _scatter_add(tgt, idx, src, axis=0):
    return tgt.clone().index_add_(axis, idx, src)

def _segment_sum(src, seg, n):
    out = torch.zeros((n,) + src.shape[1:], dtype=src.dtype)
    return out.index_add_(0, seg, src)

def _pad(x, pw):
    flat = tuple((v for pair in reversed(pw) for v in pair))
    return torch.nn.functional.pad(x, flat)
kernel_name = 'standalone__conformer_conv_module__speech'

def setup_inputs():

    _w = lambda a: (lambda t: t.to(torch.bfloat16) if t.is_floating_point() else t)(torch.as_tensor(a))
    B, T, D, K = (2, 4000, 512, 31)
    return {'x': _w((lambda *s: torch.randn(*s, dtype=torch.bfloat16) * 0.2)(B, T, D)), 'w_pw1': _w((lambda *s: torch.randn(*s, dtype=torch.bfloat16) * 0.2)(D, 2 * D)), 'dw': _w((lambda *s: torch.randn(*s, dtype=torch.bfloat16) * 0.2)(K, D)), 'w_pw2': _w((lambda *s: torch.randn(*s, dtype=torch.bfloat16) * 0.05)(D, D))}

def reference(x, w_pw1, dw, w_pw2):
    B, T, D = x.shape
    K = dw.shape[0]
    h = x @ w_pw1
    a, b = (h[..., :D].clone(), h[..., D:].clone())
    h = a * _sigmoid(b)
    pad = K // 2
    hp = _pad(h, ((0, 0), (pad, pad), (0, 0)))
    out = torch.zeros_like(h)
    for i in range(K):
        out = out + hp[:, i:i + T, :] * dw[i][None, None, :]
    return _silu(out) @ w_pw2
```

```python
class Asm:
    def __init__(self):
        self.lines = []
        self.lab = 0
    def __call__(self, s):
        for l in s.strip("\n").split("\n"):
            self.lines.append("    " + l.strip())
    def label(self, name):
        self.lines.append(name + ":")
    def newlabel(self, p="L"):
        self.lab += 1
        return f"{p}_{self.lab}"
    def comment(self, s):
        self.lines.append("    ; " + s)
    def text(self):
        return "\n".join(self.lines) + "\n"

KN = "standalone__conformer_conv_module__speech_kernel"

HEADER_COMMENT = """; Kernarg layout for this problem (56 bytes, ptrs only, base s[0:1]):
"""

def wrap_single(body, grid, block, lds, vgpr=256, sgpr=102, accum=256, name=KN):
    return (HEADER_COMMENT +
        f"; @launch grid=({grid},1,1) block=({block},1,1) lds={lds}\n"
        '.amdgcn_target "amdgcn-amd-amdhsa--gfx950"\n.text\n'
        f".globl {name}\n.p2align 8\n.type {name},@function\n{name}:\n" + body +
        '.section .rodata,"a"\n.p2align 6\n'
        f".amdhsa_kernel {name}\n"
        f"  .amdhsa_next_free_vgpr {vgpr}\n  .amdhsa_next_free_sgpr {sgpr}\n  .amdhsa_accum_offset {accum}\n"
        "  .amdhsa_group_segment_fixed_size 0\n  .amdhsa_kernarg_size 56\n  .amdhsa_user_sgpr_count 2\n"
        "  .amdhsa_user_sgpr_kernarg_segment_ptr 1\n  .amdhsa_system_sgpr_workgroup_id_x 1\n"
        ".end_amdhsa_kernel\n")
```

```python
import sys
from asmlib import *

SLOT = 53248
XB = 0
WB = 36864
HT = 125952
HTS = 592
WP = 113664
OST = 131072
S_OFF = 0
FLAG_OFF = 0x1000000
STAMP_OFF = 0x4000000

SREGS = [86,88,90,92,94,96,98,100,4,6,8,10,12,14,16]
SMAP = [0,1,2,4,5,8,9,10,11,12,13,14,16,17,18]
def slot_of(s): return (s + 1) % 3

class LQ:
    def __init__(self, a): self.a = a; self.q = []
    def issue(self, instr, tag):
        self.a(instr); self.q.append(tag)
        assert len(self.q) <= 15, "too many outstanding lds ops"
    def wait(self, tags):
        idx = -1
        for i, t in enumerate(self.q):
            if t in tags: idx = i
        if idx < 0: return
        n = len(self.q) - idx - 1
        self.a(f"s_waitcnt lgkmcnt({n})")
        self.q = self.q[idx+1:]
    def waitall(self):
        self.a("s_waitcnt lgkmcnt(0)"); self.q = []

def gen(stamps=False, spin_limit=True):
    a = Asm()
    nst = [0]
    def stamp(i):
        if stamps and i in SMAP:
            r = SREGS[SMAP.index(i)]
            a(f"s_memtime s[{r}:{r+1}]")
    if stamps:
        a("s_memtime s[82:83]")
        a("s_memrealtime s[84:85]")
    a("""
    s_cmp_ge_u32 s2, 256
    s_cbranch_scc1 L_end
    s_load_dwordx8 s[4:11], s[0:1], 0     ; x, w1, dw, w2
    s_load_dwordx4 s[12:15], s[0:1], 32
    s_load_dwordx2 s[16:17], s[0:1], 48   ; ws
    v_lshrrev_b32 v1, 6, v0
    v_and_b32 v2, 63, v0                  ; lane
    s_and_b32 s54, s2, 7                  ; xcd
    v_readfirstlane_b32 s48, v1
    s_lshr_b32 s51, s2, 3
    s_and_b32 s49, s51, 7                 ; ct
    s_lshr_b32 s51, s51, 3                ; rt&3
    s_lshl_b32 s50, s54, 2
    s_add_u32 s50, s50, s51               ; rt
    s_lshr_b32 s55, s50, 4                ; batch
    s_and_b32 s56, s50, 15
    s_mul_i32 s56, s56, 250               ; row0
    s_sub_u32 s52, s56, 15
    s_mul_i32 s57, s55, 4096000
    s_add_u32 s53, s49, s50
    s_and_b32 s53, s53, 3                 ; rot r
    s_mov_b32 s22, 4096000
    s_mov_b32 s23, 0x20000
    s_mov_b32 s26, 1048576
    s_mov_b32 s27, 0x20000
    s_mov_b32 s30, 524288
    s_mov_b32 s31, 0x20000
    s_mov_b32 s34, 31744
    s_mov_b32 s35, 0x20000
    s_mov_b32 s38, 256000
    s_mov_b32 s39, 0x20000
    s_mov_b32 s42, 0x8000000
    s_mov_b32 s43, 0x20000
    s_mov_b32 s46, 256
    s_mov_b32 s47, 0x20000
    s_lshl_b32 s58, s49, 7                ; ct*128
    v_lshrrev_b32 v4, 4, v2               ; l>>4  (q / g)
    v_and_b32 v6, 15, v2                  ; l&15
    s_cmp_lt_u32 s48, 4
    s_cbranch_scc1 L_compute
    """)
    def build_srds():
        a("""
        s_add_u32 s20, s4, s57
        s_addc_u32 s21, s5, 0
        s_mov_b32 s24, s6
        s_mov_b32 s25, s7
        s_mov_b32 s28, s10
        s_mov_b32 s29, s11
        s_mov_b32 s32, s8
        s_mov_b32 s33, s9
        s_lshl_b32 s59, s56, 10
        s_add_u32 s59, s59, s57
        s_add_u32 s36, s12, s59
        s_addc_u32 s37, s13, 0
        s_mov_b32 s40, s16
        s_mov_b32 s41, s17
        s_mov_b32 s44, s14
        s_mov_b32 s45, s15
        """)
    a("s_sub_u32 s18, s48, 4     ; lw")
    a("v_lshlrev_b32 v7, 1, v4")
    a("v_xor_b32 v7, v7, v6            ; c8 for j=0,1")
    a("v_lshrrev_b32 v8, 3, v7")
    a("v_and_b32 v9, 7, v7")
    a("v_lshlrev_b32 v9, 4, v9")
    a("v_lshl_add_u32 v9, v8, 10, v9")
    a("s_lshl_b32 s19, s18, 4")
    a("v_add_u32 v8, s19, v4           ; kr j=0")
    a("v_lshl_add_u32 v9, v8, 11, v9")
    a("v_add_u32 v25, s58, v9")
    a("v_add_u32 v26, 8192, v25")
    a("v_xor_b32 v27, 1024, v25")
    a("v_add_u32 v27, 16384, v27")
    a("v_add_u32 v28, 8192, v27")
    a("s_lshl_b32 s19, s18, 12")
    a(f"s_add_u32 s19, s19, {WB}")
    a("v_lshrrev_b32 v3, 3, v2   ; l>>3")
    a("v_and_b32 v5, 7, v2")
    a("v_add_u32 v10, s52, v3")
    a("s_lshl_b32 s3, s18, 2")
    a("v_add_u32 v11, s3, v4")
    a("v_and_b32 v11, 7, v11           ; swz")
    a("v_xor_b32 v11, v11, v5")
    a("v_lshlrev_b32 v11, 4, v11")
    a("v_lshl_add_u32 v10, v10, 10, v11")
    a("s_lshr_b32 s3, s49, 2           ; hb")
    a("s_mul_i32 s3, s3, 18")
    a("s_add_u32 s3, s3, s18           ; p_0")
    for j in range(9):
        if j: a(f"s_add_u32 s3, s3, 4")
        if j >= 4:
            a("s_sub_u32 s75, s3, 36")
            a("s_cmp_ge_u32 s3, 36")
            a("s_cselect_b32 s3, s75, s3")
        a(f"s_lshl_b32 s{60+j}, s3, 10")
        a(f"s_lshl_b32 s75, s3, 13")
        a(f"v_add_u32 v{16+j}, s75, v10")
        a(f"v_min_u32 v{16+j}, 0x80000000, v{16+j}")
    a("s_waitcnt lgkmcnt(0)")
    build_srds()
    stamp(0)
    vm = []
    def vissue(instr, tag): a(instr); vm.append(tag)
    def vwait(tag):
        idx = max(i for i, t in enumerate(vm) if t == tag)
        n = len(vm) - idx - 1
        a(f"s_waitcnt vmcnt({n})")
        del vm[:idx+1]
    def setup(s):
        a(f"s_add_u32 s3, s53, {s}")
        a(f"s_and_b32 s3, s3, 3")
        if s >= 4: a("s_add_u32 s3, s3, 4")
        a(f"s_lshl_b32 s{69+s%2}, s3, 17")
        a(f"s_lshl_b32 s{71+s%2}, s3, 7")
    def issue(s, lo=0, hi=13):
        if lo == 0: setup(s)
        base = slot_of(s) * SLOT
        for k in range(lo, hi):
            if k < 4:
                a(f"s_add_u32 m0, s19, {base + k*1024}")
                a("s_nop 0")
                vissue(f"buffer_load_dwordx4 v{25+k}, s[24:27], s{69+s%2} offen lds", ("D", s))
            else:
                j = k - 4
                a(f"s_add_u32 m0, s{60+j}, {base}")
                a("s_nop 0")
                vissue(f"buffer_load_dwordx4 v{16+j}, s[20:23], s{71+s%2} offen nt lds", ("D", s))
    issue(0)
    issue(1, 0, 6)
    a("s_lshr_b32 s3, s18, 1")
    a("s_lshl_b32 s3, s3, 2")
    a("v_add_u32 v7, s3, v4")
    a("v_lshlrev_b32 v7, 1, v7")
    a("v_xor_b32 v7, v7, v6            ; c8")
    a("v_lshlrev_b32 v7, 4, v7")
    a("s_lshl_b32 s3, s18, 2")
    a("v_add_u32 v8, s3, v4            ; 4*lw+g")
    a("v_lshl_add_u32 v7, v8, 10, v7")
    a("s_lshr_b32 s3, s49, 1")
    a("s_lshl_b32 s3, s3, 8            ; cb*256")
    a("v_add_u32 v29, s3, v7")
    a("v_lshlrev_b32 v7, 2, v5")
    a("v_lshl_add_u32 v7, v3, 10, v7")
    a("s_lshl_b32 s3, s18, 5")
    a("s_add_u32 s3, s3, s58")
    a("v_add_u32 v30, s3, v7")
    a("v_add_u32 v31, 8192, v30")
    a("v_add_u32 v32, 16384, v30")
    a("v_add_u32 v33, 24576, v30")
    a("s_and_b32 s3, s49, 1")
    a("s_lshl_b32 s75, s51, 1")
    a("s_add_u32 s3, s3, s75")
    a("s_mul_i32 s3, s3, 13")
    a("s_lshr_b32 s73, s3, 3           ; rot13")
    a("s_lshl_b32 s74, s18, 10         ; lw*1024")
    vwait(("D", 0)); stamp(1); a("s_barrier")
    issue(1, 6, 13); issue(2, 0, 6)
    vwait(("D", 1)); stamp(2); a("s_barrier")
    issue(2, 6, 13); issue(3)
    for i in range(4):
        vissue(f"buffer_load_dword v{34+i}, v{30+i}, s[32:35], 0 offen", ("dw",))
    def w2batch(g0, n, rot):
        for i in range(n):
            if rot:
                a(f"s_add_u32 s3, s73, {i}")
                a(f"s_sub_u32 s75, s3, {n}")
                a(f"s_cmp_ge_u32 s3, {n}")
                a("s_cselect_b32 s3, s75, s3")
                a(f"s_add_u32 s3, s3, {g0}")
            else:
                a(f"s_mov_b32 s3, {g0+i}")
            a("s_lshl_b32 s75, s3, 14")
            a("s_lshl_b32 s3, s3, 12")
            a("s_add_u32 m0, s3, s74")
            a("s_nop 0")
            vissue("buffer_load_dwordx4 v29, s[28:31], s75 offen lds", ("W2",))
    for s in range(2, 8):
        vwait(("D", s)); stamp(1+s); a("s_barrier")
        if s + 2 <= 7: issue(s + 2)
        if s == 6: w2batch(0, 13, True)
        if s == 7: w2batch(13, 13, True)
    a("s_barrier")
    stamp(9)
    a("s_mul_i32 s3, s18, 3072")
    a(f"s_add_u32 s3, s3, {WP}")
    a("v_lshlrev_b32 v7, 4, v2")
    a("v_add_u32 v7, s3, v7")
    for i in range(4): a(f"v_mov_b32 v{40+i}, 0")
    for i in range(3): a(f"ds_write_b128 v7, v[40:43] offset:{i*1024}")
    a("v_mul_u32_u24 v7, 384, v5")
    a("v_lshl_add_u32 v7, v3, 1, v7")
    a("v_add_u32 v7, s3, v7")
    for i in range(4):
        a(f"ds_write_b16 v7, v{34+i} offset:{16+16*i}")
        a(f"ds_write_b16 v7, v{34+i} offset:{96+14+16*i}")
        a(f"ds_write_b16_d16_hi v7, v{34+i} offset:{192+16+16*i}")
        a(f"ds_write_b16_d16_hi v7, v{34+i} offset:{192+96+14+16*i}")
    a("s_waitcnt lgkmcnt(0)")
    a("s_branch L_conv")

    a.label("L_compute")
    a("s_lshr_b32 s18, s48, 1          ; wr")
    a("s_and_b32 s19, s48, 1           ; wc")
    a("s_mul_i32 s3, s18, 144")
    a("v_add_u32 v7, s3, v6")
    a("v_lshrrev_b32 v8, 1, v6")
    a("v_xor_b32 v8, v8, v4")
    a("v_lshlrev_b32 v8, 4, v8")
    a("v_lshl_add_u32 v8, v7, 7, v8")
    a(f"v_add_u32 v8, {slot_of(0)*SLOT + XB}, v8")
    a("v_xor_b32 v9, 64, v8")
    a("v_lshrrev_b32 v7, 2, v6            ; i>>2")
    a("v_and_b32 v10, 1, v4")
    a("v_lshl_add_u32 v10, v10, 2, v7     ; w")
    a("s_lshl_b32 s3, s19, 1")
    a("v_xor_b32 v10, s3, v10             ; t^w")
    a("v_lshlrev_b32 v10, 5, v10")
    a("v_and_b32 v11, 3, v6")
    a("v_lshl_add_u32 v10, v11, 3, v10    ; + (i&3)*8")
    a("v_lshl_add_u32 v7, v4, 3, v7       ; 8g + (i>>2)")
    a("v_lshl_add_u32 v14, v7, 8, v10")
    a(f"v_add_u32 v10, {slot_of(0)*SLOT + WB}, v14")
    a("v_xor_b32 v11, 32, v10")
    a("v_xor_b32 v12, 128, v10")
    a("v_xor_b32 v13, 160, v10")
    a("s_waitcnt lgkmcnt(0)")
    build_srds()
    a("s_cmp_lg_u32 s48, 0")
    a("s_cbranch_scc1 L_nononce")
    a("s_memrealtime s[78:79]")
    a("s_lshl_b32 s3, s50, 3")
    a("v_mov_b32 v251, s3")
    a("v_mov_b32 v254, 0")
    a("v_mov_b32 v255, 0")
    a("s_waitcnt lgkmcnt(0)")
    a("s_or_b32 s79, s79, 0x40000000")
    a("v_mov_b32 v252, s78")
    a("v_mov_b32 v253, s79")
    a("s_mov_b64 exec, 1")
    a("buffer_atomic_cmpswap_x2 v[252:255], v251, s[44:47], 0 offen sc0 sc1")
    a("s_mov_b64 exec, -1")
    a.label("L_nononce")
    ACC = 16; AR = 160; NA = 8; BR = 192
    def acc(rt, c): b = ACC + (rt*4 + c)*4; return f"v[{b}:{b+3}]"
    def areg(n): b = AR + (n % NA)*4; return f"v[{b}:{b+3}]"
    def breg(kk, c, h=None):
        b = BR + (kk % 2)*16 + c*4
        if h is None: return f"v[{b}:{b+3}]"
        return f"v[{b+2*h}:{b+2*h+1}]"
    lq = LQ(a)
    NSTEP = 144
    def readA(n):
        s, r = divmod(n, 18); ks, rt = divmod(r, 9)
        lq.issue(f"ds_read_b128 {areg(n)}, v{8+ks} offset:{rt*2048}", ("A", n))
    def readB(kk, c):
        ks = kk % 2
        for h in range(2):
            lq.issue(f"ds_read_b64_tr_b16 {breg(kk,c,h)}, v{10+c} offset:{ks*8192 + h*1024}", ("B", kk, c))
    def switch_slot(s):
        d = (slot_of(s) - slot_of(s-1)) * SLOT
        for r in range(8, 14):
            if d > 0: a(f"v_add_u32 v{r}, {d}, v{r}")
            else: a(f"v_subrev_u32 v{r}, {-d}, v{r}")
    PD = 6
    BARP = 4
    stamp(0)
    a("s_barrier")
    stamp(1)
    nextA = 0
    for c in range(4): readB(0, c)
    for n in range(4): readA(n)
    nextA = 4
    for n in range(NSTEP):
        s, r = divmod(n, 18); ks, rt = divmod(r, 9)
        kk = s*2 + ks
        if r == 18 - BARP and s < 7:
            lq.waitall()
            a("s_barrier")
            switch_slot(s + 1)
            stamp(2 + s)
        if r == 18 - BARP and s == 7:
            lq.waitall()
            a("s_barrier")
            stamp(9)
        lim_stage = s + 1 if r >= 18 - BARP else s
        def canA(m): return m < NSTEP and m // 18 <= lim_stage and m < n + NA
        pend = []
        if ks == 0 and 2 <= rt <= 5: pend.append(("B", kk+1, rt-2))
        if ks == 1 and s < 7 and r >= 18 - BARP and r < 18 - BARP + 2:
            o = (r - (18 - BARP)) * 2
            pend.append(("B", kk+1, o)); pend.append(("B", kk+1, o+1))
        cnt = 0
        while canA(nextA) and nextA <= n + PD + (1 if r >= 9 else 0) and cnt < 2:
            pend.append(("A", nextA)); nextA += 1; cnt += 1
        need = [("A", n)] + ([("B", kk, c) for c in range(4)] if rt == 0 else [])
        lq.wait(need)
        for c in range(4):
            cin = "0" if kk == 0 else acc(rt, c)
            a(f"v_mfma_f32_16x16x32_bf16 {acc(rt,c)}, {areg(n)}, {breg(kk,c)}, {cin}")
            k = (len(pend) + (3 - c)) // (4 - c) if pend else 0
            for _ in range(k):
                p = pend.pop(0)
                if p[0] == "A": readA(p[1])
                else: readB(p[1], p[2])
        if r == 18 - BARP - 1:
            assert nextA >= min(NSTEP, (s+1)*18), (n, nextA)
    stamp(10)
    a("s_lshl_b32 s3, s19, 5")
    a("v_add_u32 v7, s3, v6")
    a(f"v_mul_u32_u24 v7, {HTS}, v7")
    a("v_lshl_add_u32 v7, v4, 3, v7")
    a("s_mul_i32 s3, s18, 288")
    a(f"s_add_u32 s3, s3, {HT}")
    a("v_add_u32 v7, s3, v7")
    a("s_mov_b32 s76, 0xbfb8aa3b")
    a("s_mov_b32 s77, 0xbfb8aa3b")
    a("s_nop 4")
    T = 160
    for rt in range(9):
        for j in range(2):
            av = ACC + (rt*4 + j)*4; bv = ACC + (rt*4 + 2 + j)*4
            t = T + ((rt*2 + j) % 4) * 8
            a(f"v_pk_mul_f32 v[{t}:{t+1}], v[{bv}:{bv+1}], s[76:77]")
            a(f"v_pk_mul_f32 v[{t+2}:{t+3}], v[{bv+2}:{bv+3}], s[76:77]")
            for e in range(4): a(f"v_exp_f32 v{t+e}, v{t+e}")
            a(f"v_pk_add_f32 v[{t}:{t+1}], v[{t}:{t+1}], 1.0 op_sel_hi:[1,0]")
            a(f"v_pk_add_f32 v[{t+2}:{t+3}], v[{t+2}:{t+3}], 1.0 op_sel_hi:[1,0]")
            for e in range(4): a(f"v_rcp_f32 v{t+e}, v{t+e}")
            a(f"v_pk_mul_f32 v[{t}:{t+1}], v[{t}:{t+1}], v[{av}:{av+1}]")
            a(f"v_pk_mul_f32 v[{t+2}:{t+3}], v[{t+2}:{t+3}], v[{av+2}:{av+3}]")
            a(f"v_cvt_pk_bf16_f32 v{t+4}, v{t}, v{t+1}")
            a(f"v_cvt_pk_bf16_f32 v{t+5}, v{t+2}, v{t+3}")
            a(f"ds_write_b64 v7, v[{t+4}:{t+5}] offset:{j*16*HTS + rt*32}")
    a("s_waitcnt lgkmcnt(0)")
    a.label("L_conv")
    stamp(11)
    a(f"s_mul_i32 s3, s48, {8*HTS}")
    a(f"s_add_u32 s3, s3, {HT}")
    a("v_lshlrev_b32 v16, 5, v6")
    a("v_add_u32 v16, s3, v16")
    a("v_and_b32 v17, 1, v4")
    a("v_lshl_add_u32 v17, v17, 4, v16")
    a("v_add_u32 v17, 64, v17            ; s=1 addr")
    a("v_lshl_add_u32 v16, v4, 4, v16    ; s=0 addr")
    a("s_mul_i32 s3, s48, 1536")
    a(f"s_add_u32 s3, s3, {WP}")
    for s in range(2):
        a(f"v_lshlrev_b32 v20, 3, v4")
        a(f"v_sub_u32 v20, v20, v6")
        a(f"v_add_u32 v20, {32*s+8}, v20      ; u+8")
        a("v_and_b32 v21, 1, v20")
        a("v_mul_u32_u24 v21, 94, v21")
        a("v_lshl_add_u32 v21, v20, 1, v21")
        a("v_cmp_gt_u32 vcc, 39, v20          ; 0 <= u+8 <= 38")
        a("s_nop 1")
        a("v_cndmask_b32 v21, 0, v21, vcc")
        a(f"v_add_u32 v{18+s}, s3, v21")
        a(f"v_add_u32 v{22+s}, 768, v{18+s}")
    a("s_mov_b32 s76, 0xbfb8aa3b")
    a("s_mov_b32 s77, 0xbfb8aa3b")
    a("s_lshl_b32 s3, s50, 18")
    a("s_lshl_b32 s75, s49, 11")
    a("s_add_u32 s3, s3, s75")
    a("s_lshl_b32 s75, s48, 8")
    a("s_add_u32 s3, s3, s75")
    a("v_lshlrev_b32 v24, 16, v4")
    a("v_lshl_add_u32 v24, v6, 4, v24")
    a("v_add_u32 v24, s3, v24")
    a("s_barrier")
    stamp(12)
    lq = LQ(a)
    CD = 32
    CW = 48
    CA = 64
    def cread(c):
        d = CD + (c % 2)*8; w = CW + (c % 2)*8
        lq.issue(f"ds_read_b128 v[{d}:{d+3}], v16 offset:{c*HTS}", ("c", c))
        lq.issue(f"ds_read_b128 v[{d+4}:{d+7}], v17 offset:{c*HTS}", ("c", c))
        for s in range(2):
            base = (18 + s) if c < 4 else (22 + s)
            o = (c % 4) * 48
            lq.issue(f"ds_read2_b32 v[{w+4*s}:{w+4*s+1}], v{base} offset0:{o} offset1:{o+1}", ("c", c))
            lq.issue(f"ds_read2_b32 v[{w+4*s+2}:{w+4*s+3}], v{base} offset0:{o+2} offset1:{o+3}", ("c", c))
    cread(0); cread(1)
    for c in range(8):
        d = CD + (c % 2)*8; w = CW + (c % 2)*8; ac = CA + 4*c
        lq.wait([("c", c)])
        a(f"v_mfma_f32_16x16x32_bf16 v[{ac}:{ac+3}], v[{d}:{d+3}], v[{w}:{w+3}], 0")
        a(f"v_mfma_f32_16x16x32_bf16 v[{ac}:{ac+3}], v[{d+4}:{d+7}], v[{w+4}:{w+7}], v[{ac}:{ac+3}]")
        if c + 2 < 8: cread(c + 2)
    a("s_nop 7")
    T = 96
    for c in range(8):
        ac = CA + 4*c; t = T + (c % 4)*4
        a(f"v_pk_mul_f32 v[{t}:{t+1}], v[{ac}:{ac+1}], s[76:77]")
        a(f"v_pk_mul_f32 v[{t+2}:{t+3}], v[{ac+2}:{ac+3}], s[76:77]")
        for e in range(4): a(f"v_exp_f32 v{t+e}, v{t+e}")
        a(f"v_pk_add_f32 v[{t}:{t+1}], v[{t}:{t+1}], 1.0 op_sel_hi:[1,0]")
        a(f"v_pk_add_f32 v[{t+2}:{t+3}], v[{t+2}:{t+3}], 1.0 op_sel_hi:[1,0]")
        for e in range(4): a(f"v_rcp_f32 v{t+e}, v{t+e}")
        a(f"v_pk_mul_f32 v[{ac}:{ac+1}], v[{t}:{t+1}], v[{ac}:{ac+1}]")
        a(f"v_pk_mul_f32 v[{ac+2}:{ac+3}], v[{t+2}:{t+3}], v[{ac+2}:{ac+3}]")
    P = 112
    for r in range(4):
        for e in range(4):
            a(f"v_cvt_pk_bf16_f32 v{P+4*r+e}, v{CA+8*e+r}, v{CA+8*e+4+r}")
        a(f"s_mov_b32 s3, {r*16384}")
        a(f"buffer_store_dwordx4 v[{P+4*r}:{P+4*r+3}], v24, s[40:43], s3 offen sc1")
    stamp(13)
    a("s_waitcnt vmcnt(0)")
    stamp(14)
    a("s_barrier")
    a("s_cmp_lt_u32 s48, 4")
    a("s_cbranch_scc1 L_p2")
    vm.clear()
    w2batch(26, 6, False)
    a("s_waitcnt vmcnt(0)")
    a("s_barrier")
    a("s_branch L_fin")
    a.label("L_p2")
    a("s_cmp_lg_u32 s48, 0")
    a("s_cbranch_scc1 L_nopoll")
    a("v_readfirstlane_b32 s80, v252")
    a("v_readfirstlane_b32 s81, v253")
    a("s_nop 3")
    a("s_cmp_eq_u64 s[80:81], 0")
    a("s_cselect_b32 s80, s78, s80")
    a("s_cselect_b32 s81, s79, s81")
    a("s_lshl_b32 s3, s50, 7")
    a(f"s_add_u32 s3, s3, {FLAG_OFF}")
    a("v_lshlrev_b32 v20, 3, v2")
    a("v_add_u32 v20, s3, v20")
    a("s_lshl_b32 s75, s49, 3")
    a("s_add_u32 s3, s3, s75")
    a("v_mov_b32 v21, s3")
    a("v_mov_b32 v22, s80")
    a("v_mov_b32 v23, s81")
    a("s_mov_b64 exec, 1")
    a("buffer_store_dwordx2 v[22:23], v21, s[40:43], 0 offen sc1")
    a("s_mov_b64 exec, 0xff")
    a("s_mov_b32 s3, 0")
    a.label("L_poll")
    a("buffer_load_dwordx2 v[26:27], v20, s[40:43], 0 offen sc1")
    a("s_add_u32 s3, s3, 1")
    a("s_waitcnt vmcnt(0)")
    a("v_cmp_ne_u64 vcc, s[80:81], v[26:27]")
    a("s_cmp_gt_u32 s3, 0x100000")
    a("s_cbranch_scc1 L_polldone")
    a("s_nop 3")
    a("s_cbranch_vccnz L_poll")
    a.label("L_polldone")
    a("s_mov_b64 exec, -1")
    a.label("L_nopoll")
    a("s_and_b32 s18, s49, 1             ; hf")
    a("s_lshr_b32 s19, s49, 1            ; cb")
    a("s_lshl_b32 s3, s18, 2")
    a("s_add_u32 s3, s3, s48")
    a("s_lshl_b32 s3, s3, 15")
    a("s_lshl_b32 s75, s50, 18")
    a("s_add_u32 s3, s3, s75")
    a("v_lshlrev_b32 v16, 4, v2")
    a("v_add_u32 v16, s3, v16")
    a("v_add_u32 v17, 16384, v16")
    for qq in range(4):
        a(f"s_add_u32 s3, s19, {qq}")
        a("s_and_b32 s3, s3, 3")
        a(f"s_lshl_b32 s{60+qq}, s3, 12")
    a("s_and_b32 s3, s48, 1")
    a("s_lshl_b32 s3, s3, 6")
    a("v_xor_b32 v18, s3, v14            ; t=0 addr")
    a("s_lshl_b32 s3, s19, 15")
    a("v_add_u32 v18, s3, v18            ; + cb*32768")
    for t in range(8):
        a(f"v_xor_b32 v{8+t}, {32*t}, v18")
    for qq in range(1, 4):
        a(f"s_sub_u32 s{63+qq}, s{60+qq}, s{59+qq}")
        a(f"s_lshl_b32 s{63+qq}, s{63+qq}, 3")
    stamp(15)
    a("s_barrier")
    stamp(16)
    A2 = 96; NA2 = 7
    B2 = 152; NB2 = 8
    AC2 = 32
    vm2 = []
    def loadA(k):
        qq, ks = divmod(k, 4)
        for r2 in range(2):
            b = A2 + (k % NA2)*8 + 4*r2
            a(f"buffer_load_dwordx4 v[{b}:{b+3}], v{16+r2}, s[40:43], s{60+qq} offen offset:{ks*1024} sc1")
            vm2.append(k)
    def waitA(k):
        idx = max(i for i, t in enumerate(vm2) if t == k)
        a(f"s_waitcnt vmcnt({len(vm2)-idx-1})")
        del vm2[:idx+1]
    lq = LQ(a)
    def readB2(f):
        k, T_ = divmod(f, 8); qq, ks = divmod(k, 4)
        if ks == 0 and qq > 0:
            a(f"v_add_u32 v{8+T_}, s{63+qq}, v{8+T_}")
        b = B2 + (f % NB2)*4
        for h in range(2):
            lq.issue(f"ds_read_b64_tr_b16 v[{b+2*h}:{b+2*h+1}], v{8+T_} offset:{ks*8192 + h*1024}", ("B", f))
    for k in range(6): loadA(k)
    BD = 6
    for f in range(BD): readB2(f)
    for k in range(16):
        waitA(k)
        if k == 0: stamp(17)
        for T_ in range(8):
            f = k*8 + T_
            lq.wait([("B", f)])
            b = B2 + (f % NB2)*4
            for r2 in range(2):
                ab = A2 + (k % NA2)*8 + 4*r2
                ac = AC2 + (r2*8 + T_)*4
                cin = "0" if k == 0 else f"v[{ac}:{ac+3}]"
                a(f"v_mfma_f32_16x16x32_bf16 v[{ac}:{ac+3}], v[{b}:{b+3}], v[{ab}:{ab+3}], {cin}")
                if r2 == 0 and f + BD < 128: readB2(f + BD)
            if T_ == 0 and k + 6 < 16: loadA(k + 6)
    stamp(18)
    a("s_lshl_b32 s3, s48, 13")
    a(f"s_add_u32 s3, s3, {OST}")
    a("v_lshrrev_b32 v20, 1, v4")
    a("v_xor_b32 v20, v20, v6")
    a("v_lshlrev_b32 v20, 4, v20")
    a("v_and_b32 v21, 1, v4")
    a("v_lshl_add_u32 v20, v21, 3, v20")
    a("v_lshl_add_u32 v20, v6, 8, v20")
    a("v_add_u32 v20, s3, v20             ; T=0")
    for T_ in range(1, 8):
        a(f"v_xor_b32 v{20+T_}, {32*T_}, v20")
    a("v_xor_b32 v28, v6, v4")
    a("v_lshlrev_b32 v28, 4, v28")
    a("v_lshl_add_u32 v28, v4, 8, v28")
    a("v_add_u32 v28, s3, v28             ; n=0")
    for n in range(1, 4):
        a(f"v_xor_b32 v{28+n}, {64*n}, v28")
    a("s_lshl_b32 s3, s18, 2")
    a("s_add_u32 s3, s3, s48")
    a("s_lshl_b32 s3, s3, 15")
    a("s_lshl_b32 s75, s19, 8")
    a("s_add_u32 s3, s3, s75")
    a("v_lshlrev_b32 v16, 4, v6")
    a("v_lshl_add_u32 v16, v4, 10, v16")
    a("v_add_u32 v16, s3, v16")
    PK = 96
    for r2 in range(2):
        for T_ in range(8):
            ac = AC2 + (r2*8 + T_)*4; p = PK + (r2*8 + T_)*2
            a(f"v_cvt_pk_bf16_f32 v{p}, v{ac}, v{ac+1}")
            a(f"v_cvt_pk_bf16_f32 v{p+1}, v{ac+2}, v{ac+3}")
            a(f"ds_write_b64 v{20+T_}, v[{p}:{p+1}] offset:{r2*4096}")
    RB = 128
    for n in range(8):
        a(f"ds_read_b128 v[{RB+4*n}:{RB+4*n+3}], v{28+n%4} offset:{n*1024}")
    for n in range(8):
        if n: a(f"v_add_u32 v16, 4096, v16")
        a(f"s_waitcnt lgkmcnt({7-n})")
        a(f"buffer_store_dwordx4 v[{RB+4*n}:{RB+4*n+3}], v16, s[36:39], 0 offen")
    a.label("L_fin")
    if stamps:
        a("s_waitcnt vmcnt(0)")
        a("s_memtime s[20:21]")
        a("s_memrealtime s[22:23]")
        a("s_waitcnt lgkmcnt(0)")
        a("s_and_b32 s3, s48, 3")
        a("s_cmp_lg_u32 s3, 0")
        a("s_cbranch_scc1 L_end")
        a("s_lshl_b32 s3, s2, 8")
        a("s_lshl_b32 s24, s48, 5")
        a("s_add_u32 s3, s3, s24")
        a(f"s_add_u32 s3, s3, {STAMP_OFF}")
        a("v_mov_b32 v25, s3")
        a("s_mov_b64 exec, 1")
        regs = [84, 22, 20] + SREGS
        for i, r in enumerate(regs):
            if i >= 2: a(f"s_sub_u32 s{r}, s{r}, s82")
            a(f"v_mov_b32 v20, s{r}")
            a(f"buffer_store_dword v20, v25, s[40:43], 0 offen offset:{4*i}")
    a.label("L_end")
    a("s_endpgm")
    return wrap_single(a.text(), 256, 512, 163840)

if __name__ == "__main__":
    open("k1.s", "w").write(gen(False))
    open("k1_st.s", "w").write(gen(True))
```

```python
import sys
from asmlib import *

SLOT = 53248
XB = 0
WB = 36864
HT = 125952
HTS = 592
WP = 113664
OST = 131072
S_OFF = 0
FLAG_OFF = 0x1000000
STAMP_OFF = 0x4000000

SREGS = [86,88,90,92,94,96,98,100,4,6,8,10,12,14,16]
SMAP = [0,1,2,4,5,8,9,10,11,12,13,14,16,17,18]
def slot_of(s): return (s + 1) % 3

class LQ:
    def __init__(self, a): self.a = a; self.q = []
    def issue(self, instr, tag):
        self.a(instr); self.q.append(tag)
        assert len(self.q) <= 15, "too many outstanding lds ops"
    def wait(self, tags):
        idx = -1
        for i, t in enumerate(self.q):
            if t in tags: idx = i
        if idx < 0: return
        n = len(self.q) - idx - 1
        self.a(f"s_waitcnt lgkmcnt({n})")
        self.q = self.q[idx+1:]
    def waitall(self):
        self.a("s_waitcnt lgkmcnt(0)"); self.q = []

def gen(stamps=False, spin_limit=True, dbgout=False):
    a = Asm()
    nst = [0]
    def stamp(i):
        if stamps and i in SMAP:
            r = SREGS[SMAP.index(i)]
            a(f"s_memtime s[{r}:{r+1}]")
    if stamps:
        a("s_memtime s[82:83]")
        a("s_memrealtime s[84:85]")
    a("""
    s_cmp_ge_u32 s2, 256
    s_cbranch_scc1 L_end
    s_load_dwordx8 s[4:11], s[0:1], 0     ; x, w1, dw, w2
    s_load_dwordx4 s[12:15], s[0:1], 32
    s_load_dwordx2 s[16:17], s[0:1], 48   ; ws
    v_lshrrev_b32 v1, 6, v0
    v_and_b32 v2, 63, v0                  ; lane
    s_and_b32 s54, s2, 7                  ; xcd
    v_readfirstlane_b32 s48, v1
    s_lshr_b32 s51, s2, 3
    s_and_b32 s49, s51, 7                 ; ct
    s_lshr_b32 s51, s51, 3                ; rt&3
    s_lshl_b32 s50, s54, 2
    s_add_u32 s50, s50, s51               ; rt
    s_lshr_b32 s55, s50, 4                ; batch
    s_and_b32 s56, s50, 15
    s_mul_i32 s56, s56, 250               ; row0
    s_sub_u32 s52, s56, 15
    s_mul_i32 s57, s55, 4096000
    s_add_u32 s53, s49, s50
    s_and_b32 s53, s53, 3                 ; rot r
    s_mov_b32 s22, 4096000
    s_mov_b32 s23, 0x20000
    s_mov_b32 s26, 1048576
    s_mov_b32 s27, 0x20000
    s_mov_b32 s30, 524288
    s_mov_b32 s31, 0x20000
    s_mov_b32 s34, 31744
    s_mov_b32 s35, 0x20000
    s_mov_b32 s38, 256000
    s_mov_b32 s39, 0x20000
    s_mov_b32 s42, 0x8000000
    s_mov_b32 s43, 0x20000
    s_mov_b32 s46, 256
    s_mov_b32 s47, 0x20000
    s_lshl_b32 s58, s49, 7                ; ct*128
    v_lshrrev_b32 v4, 4, v2               ; l>>4  (q / g)
    v_and_b32 v6, 15, v2                  ; l&15
    s_cmp_lt_u32 s48, 4
    s_cbranch_scc1 L_compute
    """)
    def build_srds():
        a("""
        s_add_u32 s20, s4, s57
        s_addc_u32 s21, s5, 0
        s_mov_b32 s24, s6
        s_mov_b32 s25, s7
        s_mov_b32 s28, s10
        s_mov_b32 s29, s11
        s_mov_b32 s32, s8
        s_mov_b32 s33, s9
        s_lshl_b32 s59, s56, 10
        s_add_u32 s59, s59, s57
        s_add_u32 s36, s12, s59
        s_addc_u32 s37, s13, 0
        s_mov_b32 s40, s16
        s_mov_b32 s41, s17
        s_mov_b32 s44, s14
        s_mov_b32 s45, s15
        """)
    a("s_sub_u32 s18, s48, 4     ; lw")
    a("v_lshlrev_b32 v7, 1, v4")
    a("v_xor_b32 v7, v7, v6            ; c8 for j=0,1")
    a("v_lshrrev_b32 v8, 3, v7")
    a("v_and_b32 v9, 7, v7")
    a("v_lshlrev_b32 v9, 4, v9")
    a("v_lshl_add_u32 v9, v8, 10, v9")
    a("s_lshl_b32 s19, s18, 4")
    a("v_add_u32 v8, s19, v4           ; kr j=0")
    a("v_lshl_add_u32 v9, v8, 11, v9")
    a("v_add_u32 v25, s58, v9")
    a("v_add_u32 v26, 8192, v25")
    a("v_xor_b32 v27, 1024, v25")
    a("v_add_u32 v27, 16384, v27")
    a("v_add_u32 v28, 8192, v27")
    a("s_lshl_b32 s19, s18, 12")
    a(f"s_add_u32 s19, s19, {WB}")
    a("v_lshrrev_b32 v3, 3, v2   ; l>>3")
    a("v_and_b32 v5, 7, v2")
    a("v_add_u32 v10, s52, v3")
    a("s_lshl_b32 s3, s18, 2")
    a("v_add_u32 v11, s3, v4")
    a("v_and_b32 v11, 7, v11           ; swz")
    a("v_xor_b32 v11, v11, v5")
    a("v_lshlrev_b32 v11, 4, v11")
    a("v_lshl_add_u32 v10, v10, 10, v11")
    a("s_lshr_b32 s3, s49, 2           ; hb")
    a("s_mul_i32 s3, s3, 18")
    a("s_add_u32 s3, s3, s18           ; p_0")
    for j in range(9):
        if j: a(f"s_add_u32 s3, s3, 4")
        if j >= 4:
            a("s_sub_u32 s75, s3, 36")
            a("s_cmp_ge_u32 s3, 36")
            a("s_cselect_b32 s3, s75, s3")
        a(f"s_lshl_b32 s{60+j}, s3, 10")
        a(f"s_lshl_b32 s75, s3, 13")
        a(f"v_add_u32 v{16+j}, s75, v10")
        a(f"v_min_u32 v{16+j}, 0x80000000, v{16+j}")
    a("s_waitcnt lgkmcnt(0)")
    build_srds()
    stamp(0)
    vm = []
    def vissue(instr, tag): a(instr); vm.append(tag)
    def vwait(tag):
        idx = max(i for i, t in enumerate(vm) if t == tag)
        n = len(vm) - idx - 1
        a(f"s_waitcnt vmcnt({n})")
        del vm[:idx+1]
    def setup(s):
        a(f"s_add_u32 s3, s53, {s}")
        a(f"s_and_b32 s3, s3, 3")
        if s >= 4: a("s_add_u32 s3, s3, 4")
        a(f"s_lshl_b32 s{69+s%2}, s3, 17")
        a(f"s_lshl_b32 s{71+s%2}, s3, 7")
    def issue(s, lo=0, hi=13):
        if lo == 0: setup(s)
        base = slot_of(s) * SLOT
        for k in range(lo, hi):
            if k < 4:
                a(f"s_add_u32 m0, s19, {base + k*1024}")
                a("s_nop 0")
                vissue(f"buffer_load_dwordx4 v{25+k}, s[24:27], s{69+s%2} offen lds", ("D", s))
            else:
                j = k - 4
                a(f"s_add_u32 m0, s{60+j}, {base}")
                a("s_nop 0")
                vissue(f"buffer_load_dwordx4 v{16+j}, s[20:23], s{71+s%2} offen nt lds", ("D", s))
    issue(0)
    issue(1, 0, 6)
    a("s_lshr_b32 s3, s18, 1")
    a("s_lshl_b32 s3, s3, 2")
    a("v_add_u32 v7, s3, v4")
    a("v_lshlrev_b32 v7, 1, v7")
    a("v_xor_b32 v7, v7, v6            ; c8")
    a("v_lshlrev_b32 v7, 4, v7")
    a("s_lshl_b32 s3, s18, 2")
    a("v_add_u32 v8, s3, v4            ; 4*lw+g")
    a("v_lshl_add_u32 v7, v8, 10, v7")
    a("s_lshr_b32 s3, s49, 1")
    a("s_lshl_b32 s3, s3, 8            ; cb*256")
    a("v_add_u32 v29, s3, v7")
    a("v_lshlrev_b32 v7, 2, v5")
    a("v_lshl_add_u32 v7, v3, 10, v7")
    a("s_lshl_b32 s3, s18, 5")
    a("s_add_u32 s3, s3, s58")
    a("v_add_u32 v30, s3, v7")
    a("v_add_u32 v31, 8192, v30")
    a("v_add_u32 v32, 16384, v30")
    a("v_add_u32 v33, 24576, v30")
    a("s_and_b32 s3, s49, 1")
    a("s_lshl_b32 s75, s51, 1")
    a("s_add_u32 s3, s3, s75")
    a("s_mul_i32 s3, s3, 13")
    a("s_lshr_b32 s73, s3, 3           ; rot13")
    a("s_lshl_b32 s74, s18, 10         ; lw*1024")
    vwait(("D", 0)); stamp(1); a("s_barrier")
    issue(1, 6, 13); issue(2, 0, 6)
    vwait(("D", 1)); stamp(2); a("s_barrier")
    issue(2, 6, 13); issue(3)
    for i in range(4):
        vissue(f"buffer_load_dword v{34+i}, v{30+i}, s[32:35], 0 offen", ("dw",))
    def w2batch(g0, n, rot):
        for i in range(n):
            if rot:
                a(f"s_add_u32 s3, s73, {i}")
                a(f"s_sub_u32 s75, s3, {n}")
                a(f"s_cmp_ge_u32 s3, {n}")
                a("s_cselect_b32 s3, s75, s3")
                a(f"s_add_u32 s3, s3, {g0}")
            else:
                a(f"s_mov_b32 s3, {g0+i}")
            a("s_lshl_b32 s75, s3, 14")
            a("s_lshl_b32 s3, s3, 12")
            a("s_add_u32 m0, s3, s74")
            a("s_nop 0")
            vissue("buffer_load_dwordx4 v29, s[28:31], s75 offen lds", ("W2",))
    for s in range(2, 8):
        vwait(("D", s)); stamp(1+s); a("s_barrier")
        if s + 2 <= 7: issue(s + 2)
        if s == 6: w2batch(0, 13, True)
        if s == 7: w2batch(13, 13, True)
    a("s_barrier")
    stamp(9)
    a("s_mul_i32 s3, s18, 3072")
    a(f"s_add_u32 s3, s3, {WP}")
    a("v_lshlrev_b32 v7, 4, v2")
    a("v_add_u32 v7, s3, v7")
    for i in range(4): a(f"v_mov_b32 v{40+i}, 0")
    for i in range(3): a(f"ds_write_b128 v7, v[40:43] offset:{i*1024}")
    a("v_mul_u32_u24 v7, 384, v5")
    a("v_lshl_add_u32 v7, v3, 1, v7")
    a("v_add_u32 v7, s3, v7")
    for i in range(4):
        a(f"ds_write_b16 v7, v{34+i} offset:{16+16*i}")
        a(f"ds_write_b16 v7, v{34+i} offset:{96+14+16*i}")
        a(f"ds_write_b16_d16_hi v7, v{34+i} offset:{192+16+16*i}")
        a(f"ds_write_b16_d16_hi v7, v{34+i} offset:{192+96+14+16*i}")
    a("s_waitcnt lgkmcnt(0)")
    a("s_branch L_conv")

    a.label("L_compute")
    a("s_lshr_b32 s18, s48, 1          ; wr")
    a("s_and_b32 s19, s48, 1           ; wc")
    a("s_mul_i32 s3, s18, 144")
    a("v_add_u32 v7, s3, v6")
    a("v_lshrrev_b32 v8, 1, v6")
    a("v_xor_b32 v8, v8, v4")
    a("v_lshlrev_b32 v8, 4, v8")
    a("v_lshl_add_u32 v8, v7, 7, v8")
    a(f"v_add_u32 v8, {slot_of(0)*SLOT + XB}, v8")
    a("v_xor_b32 v9, 64, v8")
    a("v_lshrrev_b32 v7, 2, v6            ; i>>2")
    a("v_and_b32 v10, 1, v4")
    a("v_lshl_add_u32 v10, v10, 2, v7     ; w")
    a("s_lshl_b32 s3, s19, 1")
    a("v_xor_b32 v10, s3, v10             ; t^w")
    a("v_lshlrev_b32 v10, 5, v10")
    a("v_and_b32 v11, 3, v6")
    a("v_lshl_add_u32 v10, v11, 3, v10    ; + (i&3)*8")
    a("v_lshl_add_u32 v7, v4, 3, v7       ; 8g + (i>>2)")
    a("v_lshl_add_u32 v14, v7, 8, v10")
    a(f"v_add_u32 v10, {slot_of(0)*SLOT + WB}, v14")
    a("v_xor_b32 v11, 32, v10")
    a("v_xor_b32 v12, 128, v10")
    a("v_xor_b32 v13, 160, v10")
    a("s_waitcnt lgkmcnt(0)")
    build_srds()
    a("s_cmp_lg_u32 s48, 0")
    a("s_cbranch_scc1 L_nononce")
    a("s_memrealtime s[78:79]")
    if dbgout:
        a("s_lshl_b32 s3, s50, 2")
        a("s_add_u32 s3, s3, 128")
        a("v_mov_b32 v251, s3")
        a("v_mov_b32 v253, 0")
        a("s_waitcnt lgkmcnt(0)")
        a("s_or_b32 s78, s78, 1")
        a("s_mov_b32 s79, 0")
        a("v_mov_b32 v252, s78")
        a("s_mov_b64 exec, 1")
        a("buffer_atomic_cmpswap v[252:253], v251, s[44:47], 0 offen sc0 sc1")
    else:
        a("s_lshl_b32 s3, s50, 3")
        a("v_mov_b32 v251, s3")
        a("v_mov_b32 v254, 0")
        a("v_mov_b32 v255, 0")
        a("s_waitcnt lgkmcnt(0)")
        a("s_or_b32 s79, s79, 0x40000000")
        a("v_mov_b32 v252, s78")
        a("v_mov_b32 v253, s79")
        a("s_mov_b64 exec, 1")
        a("buffer_atomic_cmpswap_x2 v[252:255], v251, s[44:47], 0 offen sc0 sc1")
    a("s_mov_b64 exec, -1")
    a.label("L_nononce")
    ACC = 16; AR = 160; NA = 8; BR = 192
    def acc(rt, c): b = ACC + (rt*4 + c)*4; return f"v[{b}:{b+3}]"
    def areg(n): b = AR + (n % NA)*4; return f"v[{b}:{b+3}]"
    def breg(kk, c, h=None):
        b = BR + (kk % 2)*16 + c*4
        if h is None: return f"v[{b}:{b+3}]"
        return f"v[{b+2*h}:{b+2*h+1}]"
    lq = LQ(a)
    NSTEP = 144
    def readA(n):
        s, r = divmod(n, 18); ks, rt = divmod(r, 9)
        lq.issue(f"ds_read_b128 {areg(n)}, v{8+ks} offset:{rt*2048}", ("A", n))
    def readB(kk, c):
        ks = kk % 2
        for h in range(2):
            lq.issue(f"ds_read_b64_tr_b16 {breg(kk,c,h)}, v{10+c} offset:{ks*8192 + h*1024}", ("B", kk, c))
    def switch_slot(s):
        d = (slot_of(s) - slot_of(s-1)) * SLOT
        for r in range(8, 14):
            if d > 0: a(f"v_add_u32 v{r}, {d}, v{r}")
            else: a(f"v_subrev_u32 v{r}, {-d}, v{r}")
    PD = 6
    BARP = 4
    stamp(0)
    a("s_barrier")
    stamp(1)
    nextA = 0
    for c in range(4): readB(0, c)
    for n in range(4): readA(n)
    nextA = 4
    for n in range(NSTEP):
        s, r = divmod(n, 18); ks, rt = divmod(r, 9)
        kk = s*2 + ks
        if r == 18 - BARP and s < 7:
            lq.waitall()
            a("s_barrier")
            switch_slot(s + 1)
            stamp(2 + s)
        if r == 18 - BARP and s == 7:
            lq.waitall()
            a("s_barrier")
            stamp(9)
        lim_stage = s + 1 if r >= 18 - BARP else s
        def canA(m): return m < NSTEP and m // 18 <= lim_stage and m < n + NA
        pend = []
        if ks == 0 and 2 <= rt <= 5: pend.append(("B", kk+1, rt-2))
        if ks == 1 and s < 7 and r >= 18 - BARP and r < 18 - BARP + 2:
            o = (r - (18 - BARP)) * 2
            pend.append(("B", kk+1, o)); pend.append(("B", kk+1, o+1))
        cnt = 0
        while canA(nextA) and nextA <= n + PD + (1 if r >= 9 else 0) and cnt < 2:
            pend.append(("A", nextA)); nextA += 1; cnt += 1
        need = [("A", n)] + ([("B", kk, c) for c in range(4)] if rt == 0 else [])
        lq.wait(need)
        for c in range(4):
            cin = "0" if kk == 0 else acc(rt, c)
            a(f"v_mfma_f32_16x16x32_bf16 {acc(rt,c)}, {areg(n)}, {breg(kk,c)}, {cin}")
            k = (len(pend) + (3 - c)) // (4 - c) if pend else 0
            for _ in range(k):
                p = pend.pop(0)
                if p[0] == "A": readA(p[1])
                else: readB(p[1], p[2])
        if r == 18 - BARP - 1:
            assert nextA >= min(NSTEP, (s+1)*18), (n, nextA)
    stamp(10)
    a("s_lshl_b32 s3, s19, 5")
    a("v_add_u32 v7, s3, v6")
    a(f"v_mul_u32_u24 v7, {HTS}, v7")
    a("v_lshl_add_u32 v7, v4, 3, v7")
    a("s_mul_i32 s3, s18, 288")
    a(f"s_add_u32 s3, s3, {HT}")
    a("v_add_u32 v7, s3, v7")
    a("s_mov_b32 s76, 0xbfb8aa3b")
    a("s_mov_b32 s77, 0xbfb8aa3b")
    a("s_nop 4")
    T = 160
    for rt in range(9):
        for j in range(2):
            av = ACC + (rt*4 + j)*4; bv = ACC + (rt*4 + 2 + j)*4
            t = T + ((rt*2 + j) % 4) * 8
            a(f"v_pk_mul_f32 v[{t}:{t+1}], v[{bv}:{bv+1}], s[76:77]")
            a(f"v_pk_mul_f32 v[{t+2}:{t+3}], v[{bv+2}:{bv+3}], s[76:77]")
            for e in range(4): a(f"v_exp_f32 v{t+e}, v{t+e}")
            a(f"v_pk_add_f32 v[{t}:{t+1}], v[{t}:{t+1}], 1.0 op_sel_hi:[1,0]")
            a(f"v_pk_add_f32 v[{t+2}:{t+3}], v[{t+2}:{t+3}], 1.0 op_sel_hi:[1,0]")
            for e in range(4): a(f"v_rcp_f32 v{t+e}, v{t+e}")
            a(f"v_pk_mul_f32 v[{t}:{t+1}], v[{t}:{t+1}], v[{av}:{av+1}]")
            a(f"v_pk_mul_f32 v[{t+2}:{t+3}], v[{t+2}:{t+3}], v[{av+2}:{av+3}]")
            a(f"v_cvt_pk_bf16_f32 v{t+4}, v{t}, v{t+1}")
            a(f"v_cvt_pk_bf16_f32 v{t+5}, v{t+2}, v{t+3}")
            a(f"ds_write_b64 v7, v[{t+4}:{t+5}] offset:{j*16*HTS + rt*32}")
    a("s_waitcnt lgkmcnt(0)")
    a.label("L_conv")
    stamp(11)
    a(f"s_mul_i32 s3, s48, {8*HTS}")
    a(f"s_add_u32 s3, s3, {HT}")
    a("v_lshlrev_b32 v16, 5, v6")
    a("v_add_u32 v16, s3, v16")
    a("v_and_b32 v17, 1, v4")
    a("v_lshl_add_u32 v17, v17, 4, v16")
    a("v_add_u32 v17, 64, v17            ; s=1 addr")
    a("v_lshl_add_u32 v16, v4, 4, v16    ; s=0 addr")
    a("s_mul_i32 s3, s48, 1536")
    a(f"s_add_u32 s3, s3, {WP}")
    for s in range(2):
        a(f"v_lshlrev_b32 v20, 3, v4")
        a(f"v_sub_u32 v20, v20, v6")
        a(f"v_add_u32 v20, {32*s+8}, v20      ; u+8")
        a("v_and_b32 v21, 1, v20")
        a("v_mul_u32_u24 v21, 94, v21")
        a("v_lshl_add_u32 v21, v20, 1, v21")
        a("v_cmp_gt_u32 vcc, 39, v20          ; 0 <= u+8 <= 38")
        a("s_nop 1")
        a("v_cndmask_b32 v21, 0, v21, vcc")
        a(f"v_add_u32 v{18+s}, s3, v21")
        a(f"v_add_u32 v{22+s}, 768, v{18+s}")
    a("s_mov_b32 s76, 0xbfb8aa3b")
    a("s_mov_b32 s77, 0xbfb8aa3b")
    a("s_lshl_b32 s3, s50, 18")
    a("s_lshl_b32 s75, s49, 11")
    a("s_add_u32 s3, s3, s75")
    a("s_lshl_b32 s75, s48, 8")
    a("s_add_u32 s3, s3, s75")
    a("v_lshlrev_b32 v24, 16, v4")
    a("v_lshl_add_u32 v24, v6, 4, v24")
    a("v_add_u32 v24, s3, v24")
    a("s_barrier")
    stamp(12)
    lq = LQ(a)
    CD = 32
    CW = 48
    CA = 64
    def cread(c):
        d = CD + (c % 2)*8; w = CW + (c % 2)*8
        lq.issue(f"ds_read_b128 v[{d}:{d+3}], v16 offset:{c*HTS}", ("c", c))
        lq.issue(f"ds_read_b128 v[{d+4}:{d+7}], v17 offset:{c*HTS}", ("c", c))
        for s in range(2):
            base = (18 + s) if c < 4 else (22 + s)
            o = (c % 4) * 48
            lq.issue(f"ds_read2_b32 v[{w+4*s}:{w+4*s+1}], v{base} offset0:{o} offset1:{o+1}", ("c", c))
            lq.issue(f"ds_read2_b32 v[{w+4*s+2}:{w+4*s+3}], v{base} offset0:{o+2} offset1:{o+3}", ("c", c))
    cread(0); cread(1)
    for c in range(8):
        d = CD + (c % 2)*8; w = CW + (c % 2)*8; ac = CA + 4*c
        lq.wait([("c", c)])
        a(f"v_mfma_f32_16x16x32_bf16 v[{ac}:{ac+3}], v[{d}:{d+3}], v[{w}:{w+3}], 0")
        a(f"v_mfma_f32_16x16x32_bf16 v[{ac}:{ac+3}], v[{d+4}:{d+7}], v[{w+4}:{w+7}], v[{ac}:{ac+3}]")
        if c + 2 < 8: cread(c + 2)
    a("s_nop 7")
    T = 96
    for c in range(8):
        ac = CA + 4*c; t = T + (c % 4)*4
        a(f"v_pk_mul_f32 v[{t}:{t+1}], v[{ac}:{ac+1}], s[76:77]")
        a(f"v_pk_mul_f32 v[{t+2}:{t+3}], v[{ac+2}:{ac+3}], s[76:77]")
        for e in range(4): a(f"v_exp_f32 v{t+e}, v{t+e}")
        a(f"v_pk_add_f32 v[{t}:{t+1}], v[{t}:{t+1}], 1.0 op_sel_hi:[1,0]")
        a(f"v_pk_add_f32 v[{t+2}:{t+3}], v[{t+2}:{t+3}], 1.0 op_sel_hi:[1,0]")
        for e in range(4): a(f"v_rcp_f32 v{t+e}, v{t+e}")
        a(f"v_pk_mul_f32 v[{ac}:{ac+1}], v[{t}:{t+1}], v[{ac}:{ac+1}]")
        a(f"v_pk_mul_f32 v[{ac+2}:{ac+3}], v[{t+2}:{t+3}], v[{ac+2}:{ac+3}]")
    P = 112
    for r in range(4):
        for e in range(4):
            a(f"v_cvt_pk_bf16_f32 v{P+4*r+e}, v{CA+8*e+r}, v{CA+8*e+4+r}")
        a(f"s_mov_b32 s3, {r*16384}")
        a(f"buffer_store_dwordx4 v[{P+4*r}:{P+4*r+3}], v24, s[40:43], s3 offen sc1")
    stamp(13)
    a("s_waitcnt vmcnt(0)")
    stamp(14)
    a("s_barrier")
    a("s_cmp_lt_u32 s48, 4")
    a("s_cbranch_scc1 L_p2")
    vm.clear()
    w2batch(26, 6, False)
    a("s_waitcnt vmcnt(0)")
    a("s_barrier")
    a("s_branch L_fin")
    a.label("L_p2")
    a("s_cmp_lg_u32 s48, 0")
    a("s_cbranch_scc1 L_nopoll")
    a("v_readfirstlane_b32 s80, v252")
    a("v_readfirstlane_b32 s81, v253")
    a("s_nop 3")
    a("s_cmp_eq_u64 s[80:81], 0")
    a("s_cselect_b32 s80, s78, s80")
    a("s_cselect_b32 s81, s79, s81")
    a("s_lshl_b32 s3, s50, 7")
    a(f"s_add_u32 s3, s3, {FLAG_OFF}")
    a("v_lshlrev_b32 v20, 3, v2")
    a("v_add_u32 v20, s3, v20")
    a("s_lshl_b32 s75, s49, 3")
    a("s_add_u32 s3, s3, s75")
    a("v_mov_b32 v21, s3")
    a("v_mov_b32 v22, s80")
    a("v_mov_b32 v23, s81")
    a("s_mov_b64 exec, 1")
    a("buffer_store_dwordx2 v[22:23], v21, s[40:43], 0 offen sc1")
    a("s_mov_b64 exec, 0xff")
    a("s_mov_b32 s3, 0")
    a.label("L_poll")
    a("buffer_load_dwordx2 v[26:27], v20, s[40:43], 0 offen sc1")
    a("s_add_u32 s3, s3, 1")
    a("s_waitcnt vmcnt(0)")
    a("v_cmp_ne_u64 vcc, s[80:81], v[26:27]")
    a("s_cmp_gt_u32 s3, 0x100000")
    a("s_cbranch_scc1 L_polldone")
    a("s_nop 3")
    a("s_cbranch_vccnz L_poll")
    a.label("L_polldone")
    a("s_mov_b64 exec, -1")
    a.label("L_nopoll")
    a("s_and_b32 s18, s49, 1             ; hf")
    a("s_lshr_b32 s19, s49, 1            ; cb")
    a("s_lshl_b32 s3, s18, 2")
    a("s_add_u32 s3, s3, s48")
    a("s_lshl_b32 s3, s3, 15")
    a("s_lshl_b32 s75, s50, 18")
    a("s_add_u32 s3, s3, s75")
    a("v_lshlrev_b32 v16, 4, v2")
    a("v_add_u32 v16, s3, v16")
    a("v_add_u32 v17, 16384, v16")
    for qq in range(4):
        a(f"s_add_u32 s3, s19, {qq}")
        a("s_and_b32 s3, s3, 3")
        a(f"s_lshl_b32 s{60+qq}, s3, 12")
    a("s_and_b32 s3, s48, 1")
    a("s_lshl_b32 s3, s3, 6")
    a("v_xor_b32 v18, s3, v14            ; t=0 addr")
    a("s_lshl_b32 s3, s19, 15")
    a("v_add_u32 v18, s3, v18            ; + cb*32768")
    for t in range(8):
        a(f"v_xor_b32 v{8+t}, {32*t}, v18")
    for qq in range(1, 4):
        a(f"s_sub_u32 s{63+qq}, s{60+qq}, s{59+qq}")
        a(f"s_lshl_b32 s{63+qq}, s{63+qq}, 3")
    stamp(15)
    a("s_barrier")
    stamp(16)
    A2 = 96; NA2 = 7
    B2 = 152; NB2 = 8
    AC2 = 32
    vm2 = []
    def loadA(k):
        qq, ks = divmod(k, 4)
        for r2 in range(2):
            b = A2 + (k % NA2)*8 + 4*r2
            a(f"buffer_load_dwordx4 v[{b}:{b+3}], v{16+r2}, s[40:43], s{60+qq} offen offset:{ks*1024} sc1")
            vm2.append(k)
    def waitA(k):
        idx = max(i for i, t in enumerate(vm2) if t == k)
        a(f"s_waitcnt vmcnt({len(vm2)-idx-1})")
        del vm2[:idx+1]
    lq = LQ(a)
    def readB2(f):
        k, T_ = divmod(f, 8); qq, ks = divmod(k, 4)
        if ks == 0 and qq > 0:
            a(f"v_add_u32 v{8+T_}, s{63+qq}, v{8+T_}")
        b = B2 + (f % NB2)*4
        for h in range(2):
            lq.issue(f"ds_read_b64_tr_b16 v[{b+2*h}:{b+2*h+1}], v{8+T_} offset:{ks*8192 + h*1024}", ("B", f))
    for k in range(6): loadA(k)
    BD = 6
    for f in range(BD): readB2(f)
    for k in range(16):
        waitA(k)
        if k == 0: stamp(17)
        for T_ in range(8):
            f = k*8 + T_
            lq.wait([("B", f)])
            b = B2 + (f % NB2)*4
            for r2 in range(2):
                ab = A2 + (k % NA2)*8 + 4*r2
                ac = AC2 + (r2*8 + T_)*4
                cin = "0" if k == 0 else f"v[{ac}:{ac+3}]"
                a(f"v_mfma_f32_16x16x32_bf16 v[{ac}:{ac+3}], v[{b}:{b+3}], v[{ab}:{ab+3}], {cin}")
                if r2 == 0 and f + BD < 128: readB2(f + BD)
            if T_ == 0 and k + 6 < 16: loadA(k + 6)
    stamp(18)
    a("s_lshl_b32 s3, s48, 13")
    a(f"s_add_u32 s3, s3, {OST}")
    a("v_lshrrev_b32 v20, 1, v4")
    a("v_xor_b32 v20, v20, v6")
    a("v_lshlrev_b32 v20, 4, v20")
    a("v_and_b32 v21, 1, v4")
    a("v_lshl_add_u32 v20, v21, 3, v20")
    a("v_lshl_add_u32 v20, v6, 8, v20")
    a("v_add_u32 v20, s3, v20             ; T=0")
    for T_ in range(1, 8):
        a(f"v_xor_b32 v{20+T_}, {32*T_}, v20")
    a("v_xor_b32 v28, v6, v4")
    a("v_lshlrev_b32 v28, 4, v28")
    a("v_lshl_add_u32 v28, v4, 8, v28")
    a("v_add_u32 v28, s3, v28             ; n=0")
    for n in range(1, 4):
        a(f"v_xor_b32 v{28+n}, {64*n}, v28")
    a("s_lshl_b32 s3, s18, 2")
    a("s_add_u32 s3, s3, s48")
    a("s_lshl_b32 s3, s3, 15")
    a("s_lshl_b32 s75, s19, 8")
    a("s_add_u32 s3, s3, s75")
    a("v_lshlrev_b32 v16, 4, v6")
    a("v_lshl_add_u32 v16, v4, 10, v16")
    a("v_add_u32 v16, s3, v16")
    PK = 96
    for r2 in range(2):
        for T_ in range(8):
            ac = AC2 + (r2*8 + T_)*4; p = PK + (r2*8 + T_)*2
            a(f"v_cvt_pk_bf16_f32 v{p}, v{ac}, v{ac+1}")
            a(f"v_cvt_pk_bf16_f32 v{p+1}, v{ac+2}, v{ac+3}")
            a(f"ds_write_b64 v{20+T_}, v[{p}:{p+1}] offset:{r2*4096}")
    RB = 128
    for n in range(8):
        a(f"ds_read_b128 v[{RB+4*n}:{RB+4*n+3}], v{28+n%4} offset:{n*1024}")
    for n in range(8):
        if n: a(f"v_add_u32 v16, 4096, v16")
        a(f"s_waitcnt lgkmcnt({7-n})")
        a(f"buffer_store_dwordx4 v[{RB+4*n}:{RB+4*n+3}], v16, s[36:39], 0 offen")
    a.label("L_fin")
    if stamps:
        a("s_waitcnt vmcnt(0)")
        a("s_memtime s[20:21]")
        a("s_memrealtime s[22:23]")
        a("s_waitcnt lgkmcnt(0)")
        if dbgout:
            a("s_cmp_lg_u32 s48, 0")
            a("s_cbranch_scc1 L_end")
            a("s_and_b32 s3, s2, 0x7f")
            a("s_cmp_lg_u32 s3, 0x45")
            a("s_cbranch_scc1 L_end")
            a("s_lshr_b32 s3, s2, 7")
            a("s_lshl_b32 s3, s3, 5")
            a("v_mov_b32 v25, s3")
            a("s_mov_b64 exec, 1")
            a("s_sub_u32 s22, s22, s84")
            for i, r in enumerate([22, 20] + [SREGS[SMAP.index(k)] for k in (1, 10, 12, 14, 16, 18)]):
                if i >= 1: a(f"s_sub_u32 s{r}, s{r}, s82")
                a(f"v_mov_b32 v20, s{r}")
                a(f"buffer_store_dword v20, v25, s[44:47], 0 offen offset:{4*i}")
            a("s_branch L_end")
        a("s_and_b32 s3, s48, 3")
        a("s_cmp_lg_u32 s3, 0")
        a("s_cbranch_scc1 L_end")
        a("s_lshl_b32 s3, s2, 8")
        a("s_lshl_b32 s24, s48, 5")
        a("s_add_u32 s3, s3, s24")
        a(f"s_add_u32 s3, s3, {STAMP_OFF}")
        a("v_mov_b32 v25, s3")
        a("s_mov_b64 exec, 1")
        regs = [84, 22, 20] + SREGS
        for i, r in enumerate(regs):
            if i >= 2: a(f"s_sub_u32 s{r}, s{r}, s82")
            a(f"v_mov_b32 v20, s{r}")
            a(f"buffer_store_dword v20, v25, s[40:43], 0 offen offset:{4*i}")
    a.label("L_end")
    a("s_endpgm")
    return wrap_single(a.text(), 256, 512, 163840)

if __name__ == "__main__":
    open("k1.s", "w").write(gen(False))
    open("k1_st.s", "w").write(gen(True))
    open("k1_dbg.s", "w").write(gen(True, dbgout=True))
```

```python
import sys
from asmlib import *

SLOT = 53248
XB = 0
WB = 36864
HT = 125952
HTS = 592
WP = 113664
OST = 131072
S_OFF = 0
FLAG_OFF = 0x1000000
STAMP_OFF = 0x4000000

SREGS = [86,88,90,92,94,96,98,100,4,6,8,10,12,14,16]
SMAP = [0,1,2,4,5,8,9,10,11,12,13,14,16,17,18]
def slot_of(s): return (s + 1) % 3

class LQ:
    def __init__(self, a): self.a = a; self.q = []
    def issue(self, instr, tag):
        self.a(instr); self.q.append(tag)
        assert len(self.q) <= 15, "too many outstanding lds ops"
    def wait(self, tags):
        idx = -1
        for i, t in enumerate(self.q):
            if t in tags: idx = i
        if idx < 0: return
        n = len(self.q) - idx - 1
        self.a(f"s_waitcnt lgkmcnt({n})")
        self.q = self.q[idx+1:]
    def waitall(self):
        self.a("s_waitcnt lgkmcnt(0)"); self.q = []

def gen(stamps=False, spin_limit=True, dbgout=False, pretouch=None):
    a = Asm()
    nst = [0]
    def stamp(i):
        if stamps and i in SMAP:
            r = SREGS[SMAP.index(i)]
            a(f"s_memtime s[{r}:{r+1}]")
    if stamps:
        a("s_memtime s[82:83]")
        a("s_memrealtime s[84:85]")
    a("""
    s_cmp_ge_u32 s2, 256
    s_cbranch_scc1 L_end
    s_load_dwordx8 s[4:11], s[0:1], 0     ; x, w1, dw, w2
    s_load_dwordx4 s[12:15], s[0:1], 32
    s_load_dwordx2 s[16:17], s[0:1], 48   ; ws
    v_lshrrev_b32 v1, 6, v0
    v_and_b32 v2, 63, v0                  ; lane
    s_and_b32 s54, s2, 7                  ; xcd
    v_readfirstlane_b32 s48, v1
    s_lshr_b32 s51, s2, 3
    s_and_b32 s49, s51, 7                 ; ct
    s_lshr_b32 s51, s51, 3                ; rt&3
    s_lshl_b32 s50, s54, 2
    s_add_u32 s50, s50, s51               ; rt
    s_lshr_b32 s55, s50, 4                ; batch
    s_and_b32 s56, s50, 15
    s_mul_i32 s56, s56, 250               ; row0
    s_sub_u32 s52, s56, 15
    s_mul_i32 s57, s55, 4096000
    s_add_u32 s53, s49, s50
    s_and_b32 s53, s53, 3                 ; rot r
    s_mov_b32 s22, 4096000
    s_mov_b32 s23, 0x20000
    s_mov_b32 s26, 1048576
    s_mov_b32 s27, 0x20000
    s_mov_b32 s30, 524288
    s_mov_b32 s31, 0x20000
    s_mov_b32 s34, 31744
    s_mov_b32 s35, 0x20000
    s_mov_b32 s38, 256000
    s_mov_b32 s39, 0x20000
    s_mov_b32 s42, 0x8000000
    s_mov_b32 s43, 0x20000
    s_mov_b32 s46, 256
    s_mov_b32 s47, 0x20000
    s_lshl_b32 s58, s49, 7                ; ct*128
    v_lshrrev_b32 v4, 4, v2               ; l>>4  (q / g)
    v_and_b32 v6, 15, v2                  ; l&15
    s_cmp_lt_u32 s48, 4
    s_cbranch_scc1 L_compute
    """)
    def build_srds():
        a("""
        s_add_u32 s20, s4, s57
        s_addc_u32 s21, s5, 0
        s_mov_b32 s24, s6
        s_mov_b32 s25, s7
        s_mov_b32 s28, s10
        s_mov_b32 s29, s11
        s_mov_b32 s32, s8
        s_mov_b32 s33, s9
        s_lshl_b32 s59, s56, 10
        s_add_u32 s59, s59, s57
        s_add_u32 s36, s12, s59
        s_addc_u32 s37, s13, 0
        s_mov_b32 s40, s16
        s_mov_b32 s41, s17
        s_mov_b32 s44, s14
        s_mov_b32 s45, s15
        """)
    a("s_sub_u32 s18, s48, 4     ; lw")
    a("v_lshlrev_b32 v7, 1, v4")
    a("v_xor_b32 v7, v7, v6            ; c8 for j=0,1")
    a("v_lshrrev_b32 v8, 3, v7")
    a("v_and_b32 v9, 7, v7")
    a("v_lshlrev_b32 v9, 4, v9")
    a("v_lshl_add_u32 v9, v8, 10, v9")
    a("s_lshl_b32 s19, s18, 4")
    a("v_add_u32 v8, s19, v4           ; kr j=0")
    a("v_lshl_add_u32 v9, v8, 11, v9")
    a("v_add_u32 v25, s58, v9")
    a("v_add_u32 v26, 8192, v25")
    a("v_xor_b32 v27, 1024, v25")
    a("v_add_u32 v27, 16384, v27")
    a("v_add_u32 v28, 8192, v27")
    a("s_lshl_b32 s19, s18, 12")
    a(f"s_add_u32 s19, s19, {WB}")
    a("v_lshrrev_b32 v3, 3, v2   ; l>>3")
    a("v_and_b32 v5, 7, v2")
    a("v_add_u32 v10, s52, v3")
    a("s_lshl_b32 s3, s18, 2")
    a("v_add_u32 v11, s3, v4")
    a("v_and_b32 v11, 7, v11           ; swz")
    a("v_xor_b32 v11, v11, v5")
    a("v_lshlrev_b32 v11, 4, v11")
    a("v_lshl_add_u32 v10, v10, 10, v11")
    a("s_lshr_b32 s3, s49, 2           ; hb")
    a("s_mul_i32 s3, s3, 18")
    a("s_add_u32 s3, s3, s18           ; p_0")
    for j in range(9):
        if j: a(f"s_add_u32 s3, s3, 4")
        if j >= 4:
            a("s_sub_u32 s75, s3, 36")
            a("s_cmp_ge_u32 s3, 36")
            a("s_cselect_b32 s3, s75, s3")
        a(f"s_lshl_b32 s{60+j}, s3, 10")
        a(f"s_lshl_b32 s75, s3, 13")
        a(f"v_add_u32 v{16+j}, s75, v10")
        a(f"v_min_u32 v{16+j}, 0x80000000, v{16+j}")
    a("s_waitcnt lgkmcnt(0)")
    build_srds()
    stamp(0)
    vm = []
    def vissue(instr, tag): a(instr); vm.append(tag)
    def vwait(tag):
        idx = max(i for i, t in enumerate(vm) if t == tag)
        n = len(vm) - idx - 1
        a(f"s_waitcnt vmcnt({n})")
        del vm[:idx+1]
    def setup(s):
        a(f"s_add_u32 s3, s53, {s}")
        a(f"s_and_b32 s3, s3, 3")
        if s >= 4: a("s_add_u32 s3, s3, 4")
        a(f"s_lshl_b32 s{69+s%2}, s3, 17")
        a(f"s_lshl_b32 s{71+s%2}, s3, 7")
    def issue(s, lo=0, hi=13):
        if lo == 0: setup(s)
        base = slot_of(s) * SLOT
        for k in range(lo, hi):
            if k < 4:
                a(f"s_add_u32 m0, s19, {base + k*1024}")
                a("s_nop 0")
                vissue(f"buffer_load_dwordx4 v{25+k}, s[24:27], s{69+s%2} offen lds", ("D", s))
            else:
                j = k - 4
                a(f"s_add_u32 m0, s{60+j}, {base}")
                a("s_nop 0")
                vissue(f"buffer_load_dwordx4 v{16+j}, s[20:23], s{71+s%2} offen nt lds", ("D", s))
    issue(0)
    issue(1, 0, 6)
    a("s_lshr_b32 s3, s18, 1")
    a("s_lshl_b32 s3, s3, 2")
    a("v_add_u32 v7, s3, v4")
    a("v_lshlrev_b32 v7, 1, v7")
    a("v_xor_b32 v7, v7, v6            ; c8")
    a("v_lshlrev_b32 v7, 4, v7")
    a("s_lshl_b32 s3, s18, 2")
    a("v_add_u32 v8, s3, v4            ; 4*lw+g")
    a("v_lshl_add_u32 v7, v8, 10, v7")
    a("s_lshr_b32 s3, s49, 1")
    a("s_lshl_b32 s3, s3, 8            ; cb*256")
    a("v_add_u32 v29, s3, v7")
    a("v_lshlrev_b32 v7, 2, v5")
    a("v_lshl_add_u32 v7, v3, 10, v7")
    a("s_lshl_b32 s3, s18, 5")
    a("s_add_u32 s3, s3, s58")
    a("v_add_u32 v30, s3, v7")
    a("v_add_u32 v31, 8192, v30")
    a("v_add_u32 v32, 16384, v30")
    a("v_add_u32 v33, 24576, v30")
    a("s_and_b32 s3, s49, 1")
    a("s_lshl_b32 s75, s51, 1")
    a("s_add_u32 s3, s3, s75")
    a("s_mul_i32 s3, s3, 13")
    a("s_lshr_b32 s73, s3, 3           ; rot13")
    a("s_lshl_b32 s74, s18, 10         ; lw*1024")
    vwait(("D", 0)); stamp(1); a("s_barrier")
    issue(1, 6, 13); issue(2, 0, 6)
    vwait(("D", 1)); stamp(2); a("s_barrier")
    issue(2, 6, 13); issue(3)
    for i in range(4):
        vissue(f"buffer_load_dword v{34+i}, v{30+i}, s[32:35], 0 offen", ("dw",))
    def w2batch(g0, n, rot):
        for i in range(n):
            if rot:
                a(f"s_add_u32 s3, s73, {i}")
                a(f"s_sub_u32 s75, s3, {n}")
                a(f"s_cmp_ge_u32 s3, {n}")
                a("s_cselect_b32 s3, s75, s3")
                a(f"s_add_u32 s3, s3, {g0}")
            else:
                a(f"s_mov_b32 s3, {g0+i}")
            a("s_lshl_b32 s75, s3, 14")
            a("s_lshl_b32 s3, s3, 12")
            a("s_add_u32 m0, s3, s74")
            a("s_nop 0")
            vissue("buffer_load_dwordx4 v29, s[28:31], s75 offen lds", ("W2",))
    for s in range(2, 8):
        vwait(("D", s)); stamp(1+s); a("s_barrier")
        if s + 2 <= 7: issue(s + 2)
        if pretouch is not None and s == pretouch[0]:
            a("s_lshl_b32 s3, s50, 18")
            a("s_lshl_b32 s75, s49, 11")
            a("s_add_u32 s3, s3, s75")
            a("s_lshl_b32 s75, s18, 16")
            a("s_add_u32 s3, s3, s75")
            a("v_lshlrev_b32 v44, 14, v4")
            a("v_lshl_add_u32 v44, v6, 7, v44")
            a("v_add_u32 v44, s3, v44")
            vissue(f"buffer_load_dword v45, v44, s[40:43], 0 offen {pretouch[1]}", ("pt",))
        if s == 6: w2batch(0, 13, True)
        if s == 7: w2batch(13, 13, True)
    a("s_barrier")
    stamp(9)
    a("s_mul_i32 s3, s18, 3072")
    a(f"s_add_u32 s3, s3, {WP}")
    a("v_lshlrev_b32 v7, 4, v2")
    a("v_add_u32 v7, s3, v7")
    for i in range(4): a(f"v_mov_b32 v{40+i}, 0")
    for i in range(3): a(f"ds_write_b128 v7, v[40:43] offset:{i*1024}")
    a("v_mul_u32_u24 v7, 384, v5")
    a("v_lshl_add_u32 v7, v3, 1, v7")
    a("v_add_u32 v7, s3, v7")
    for i in range(4):
        a(f"ds_write_b16 v7, v{34+i} offset:{16+16*i}")
        a(f"ds_write_b16 v7, v{34+i} offset:{96+14+16*i}")
        a(f"ds_write_b16_d16_hi v7, v{34+i} offset:{192+16+16*i}")
        a(f"ds_write_b16_d16_hi v7, v{34+i} offset:{192+96+14+16*i}")
    a("s_waitcnt lgkmcnt(0)")
    a("s_branch L_conv")

    a.label("L_compute")
    a("s_lshr_b32 s18, s48, 1          ; wr")
    a("s_and_b32 s19, s48, 1           ; wc")
    a("s_mul_i32 s3, s18, 144")
    a("v_add_u32 v7, s3, v6")
    a("v_lshrrev_b32 v8, 1, v6")
    a("v_xor_b32 v8, v8, v4")
    a("v_lshlrev_b32 v8, 4, v8")
    a("v_lshl_add_u32 v8, v7, 7, v8")
    a(f"v_add_u32 v8, {slot_of(0)*SLOT + XB}, v8")
    a("v_xor_b32 v9, 64, v8")
    a("v_lshrrev_b32 v7, 2, v6            ; i>>2")
    a("v_and_b32 v10, 1, v4")
    a("v_lshl_add_u32 v10, v10, 2, v7     ; w")
    a("s_lshl_b32 s3, s19, 1")
    a("v_xor_b32 v10, s3, v10             ; t^w")
    a("v_lshlrev_b32 v10, 5, v10")
    a("v_and_b32 v11, 3, v6")
    a("v_lshl_add_u32 v10, v11, 3, v10    ; + (i&3)*8")
    a("v_lshl_add_u32 v7, v4, 3, v7       ; 8g + (i>>2)")
    a("v_lshl_add_u32 v14, v7, 8, v10")
    a(f"v_add_u32 v10, {slot_of(0)*SLOT + WB}, v14")
    a("v_xor_b32 v11, 32, v10")
    a("v_xor_b32 v12, 128, v10")
    a("v_xor_b32 v13, 160, v10")
    a("s_waitcnt lgkmcnt(0)")
    build_srds()
    a("s_cmp_lg_u32 s48, 0")
    a("s_cbranch_scc1 L_nononce")
    a("s_memrealtime s[78:79]")
    if dbgout:
        a("s_lshl_b32 s3, s50, 2")
        a("s_add_u32 s3, s3, 128")
        a("v_mov_b32 v251, s3")
        a("v_mov_b32 v253, 0")
        a("s_waitcnt lgkmcnt(0)")
        a("s_or_b32 s78, s78, 1")
        a("s_mov_b32 s79, 0")
        a("v_mov_b32 v252, s78")
        a("s_mov_b64 exec, 1")
        a("buffer_atomic_cmpswap v[252:253], v251, s[44:47], 0 offen sc0 sc1")
    else:
        a("s_lshl_b32 s3, s50, 3")
        a("v_mov_b32 v251, s3")
        a("v_mov_b32 v254, 0")
        a("v_mov_b32 v255, 0")
        a("s_waitcnt lgkmcnt(0)")
        a("s_or_b32 s79, s79, 0x40000000")
        a("v_mov_b32 v252, s78")
        a("v_mov_b32 v253, s79")
        a("s_mov_b64 exec, 1")
        a("buffer_atomic_cmpswap_x2 v[252:255], v251, s[44:47], 0 offen sc0 sc1")
    a("s_mov_b64 exec, -1")
    a.label("L_nononce")
    ACC = 16; AR = 160; NA = 8; BR = 192
    def acc(rt, c): b = ACC + (rt*4 + c)*4; return f"v[{b}:{b+3}]"
    def areg(n): b = AR + (n % NA)*4; return f"v[{b}:{b+3}]"
    def breg(kk, c, h=None):
        b = BR + (kk % 2)*16 + c*4
        if h is None: return f"v[{b}:{b+3}]"
        return f"v[{b+2*h}:{b+2*h+1}]"
    lq = LQ(a)
    NSTEP = 144
    def readA(n):
        s, r = divmod(n, 18); ks, rt = divmod(r, 9)
        lq.issue(f"ds_read_b128 {areg(n)}, v{8+ks} offset:{rt*2048}", ("A", n))
    def readB(kk, c):
        ks = kk % 2
        for h in range(2):
            lq.issue(f"ds_read_b64_tr_b16 {breg(kk,c,h)}, v{10+c} offset:{ks*8192 + h*1024}", ("B", kk, c))
    def switch_slot(s):
        d = (slot_of(s) - slot_of(s-1)) * SLOT
        for r in range(8, 14):
            if d > 0: a(f"v_add_u32 v{r}, {d}, v{r}")
            else: a(f"v_subrev_u32 v{r}, {-d}, v{r}")
    PD = 6
    BARP = 4
    stamp(0)
    a("s_barrier")
    stamp(1)
    nextA = 0
    for c in range(4): readB(0, c)
    for n in range(4): readA(n)
    nextA = 4
    for n in range(NSTEP):
        s, r = divmod(n, 18); ks, rt = divmod(r, 9)
        kk = s*2 + ks
        if r == 18 - BARP and s < 7:
            lq.waitall()
            a("s_barrier")
            switch_slot(s + 1)
            stamp(2 + s)
        if r == 18 - BARP and s == 7:
            lq.waitall()
            a("s_barrier")
            stamp(9)
        lim_stage = s + 1 if r >= 18 - BARP else s
        def canA(m): return m < NSTEP and m // 18 <= lim_stage and m < n + NA
        pend = []
        if ks == 0 and 2 <= rt <= 5: pend.append(("B", kk+1, rt-2))
        if ks == 1 and s < 7 and r >= 18 - BARP and r < 18 - BARP + 2:
            o = (r - (18 - BARP)) * 2
            pend.append(("B", kk+1, o)); pend.append(("B", kk+1, o+1))
        cnt = 0
        while canA(nextA) and nextA <= n + PD + (1 if r >= 9 else 0) and cnt < 2:
            pend.append(("A", nextA)); nextA += 1; cnt += 1
        need = [("A", n)] + ([("B", kk, c) for c in range(4)] if rt == 0 else [])
        lq.wait(need)
        for c in range(4):
            cin = "0" if kk == 0 else acc(rt, c)
            a(f"v_mfma_f32_16x16x32_bf16 {acc(rt,c)}, {areg(n)}, {breg(kk,c)}, {cin}")
            k = (len(pend) + (3 - c)) // (4 - c) if pend else 0
            for _ in range(k):
                p = pend.pop(0)
                if p[0] == "A": readA(p[1])
                else: readB(p[1], p[2])
        if r == 18 - BARP - 1:
            assert nextA >= min(NSTEP, (s+1)*18), (n, nextA)
    stamp(10)
    a("s_lshl_b32 s3, s19, 5")
    a("v_add_u32 v7, s3, v6")
    a(f"v_mul_u32_u24 v7, {HTS}, v7")
    a("v_lshl_add_u32 v7, v4, 3, v7")
    a("s_mul_i32 s3, s18, 288")
    a(f"s_add_u32 s3, s3, {HT}")
    a("v_add_u32 v7, s3, v7")
    a("s_mov_b32 s76, 0xbfb8aa3b")
    a("s_mov_b32 s77, 0xbfb8aa3b")
    a("s_nop 4")
    T = 160
    for rt in range(9):
        for j in range(2):
            av = ACC + (rt*4 + j)*4; bv = ACC + (rt*4 + 2 + j)*4
            t = T + ((rt*2 + j) % 4) * 8
            a(f"v_pk_mul_f32 v[{t}:{t+1}], v[{bv}:{bv+1}], s[76:77]")
            a(f"v_pk_mul_f32 v[{t+2}:{t+3}], v[{bv+2}:{bv+3}], s[76:77]")
            for e in range(4): a(f"v_exp_f32 v{t+e}, v{t+e}")
            a(f"v_pk_add_f32 v[{t}:{t+1}], v[{t}:{t+1}], 1.0 op_sel_hi:[1,0]")
            a(f"v_pk_add_f32 v[{t+2}:{t+3}], v[{t+2}:{t+3}], 1.0 op_sel_hi:[1,0]")
            for e in range(4): a(f"v_rcp_f32 v{t+e}, v{t+e}")
            a(f"v_pk_mul_f32 v[{t}:{t+1}], v[{t}:{t+1}], v[{av}:{av+1}]")
            a(f"v_pk_mul_f32 v[{t+2}:{t+3}], v[{t+2}:{t+3}], v[{av+2}:{av+3}]")
            a(f"v_cvt_pk_bf16_f32 v{t+4}, v{t}, v{t+1}")
            a(f"v_cvt_pk_bf16_f32 v{t+5}, v{t+2}, v{t+3}")
            a(f"ds_write_b64 v7, v[{t+4}:{t+5}] offset:{j*16*HTS + rt*32}")
    a("s_waitcnt lgkmcnt(0)")
    a.label("L_conv")
    stamp(11)
    a(f"s_mul_i32 s3, s48, {8*HTS}")
    a(f"s_add_u32 s3, s3, {HT}")
    a("v_lshlrev_b32 v16, 5, v6")
    a("v_add_u32 v16, s3, v16")
    a("v_and_b32 v17, 1, v4")
    a("v_lshl_add_u32 v17, v17, 4, v16")
    a("v_add_u32 v17, 64, v17            ; s=1 addr")
    a("v_lshl_add_u32 v16, v4, 4, v16    ; s=0 addr")
    a("s_mul_i32 s3, s48, 1536")
    a(f"s_add_u32 s3, s3, {WP}")
    for s in range(2):
        a(f"v_lshlrev_b32 v20, 3, v4")
        a(f"v_sub_u32 v20, v20, v6")
        a(f"v_add_u32 v20, {32*s+8}, v20      ; u+8")
        a("v_and_b32 v21, 1, v20")
        a("v_mul_u32_u24 v21, 94, v21")
        a("v_lshl_add_u32 v21, v20, 1, v21")
        a("v_cmp_gt_u32 vcc, 39, v20          ; 0 <= u+8 <= 38")
        a("s_nop 1")
        a("v_cndmask_b32 v21, 0, v21, vcc")
        a(f"v_add_u32 v{18+s}, s3, v21")
        a(f"v_add_u32 v{22+s}, 768, v{18+s}")
    a("s_mov_b32 s76, 0xbfb8aa3b")
    a("s_mov_b32 s77, 0xbfb8aa3b")
    a("s_lshl_b32 s3, s50, 18")
    a("s_lshl_b32 s75, s49, 11")
    a("s_add_u32 s3, s3, s75")
    a("s_lshl_b32 s75, s48, 8")
    a("s_add_u32 s3, s3, s75")
    a("v_lshlrev_b32 v24, 16, v4")
    a("v_lshl_add_u32 v24, v6, 4, v24")
    a("v_add_u32 v24, s3, v24")
    a("s_barrier")
    stamp(12)
    lq = LQ(a)
    CD = 32
    CW = 48
    CA = 64
    def cread(c):
        d = CD + (c % 2)*8; w = CW + (c % 2)*8
        lq.issue(f"ds_read_b128 v[{d}:{d+3}], v16 offset:{c*HTS}", ("c", c))
        lq.issue(f"ds_read_b128 v[{d+4}:{d+7}], v17 offset:{c*HTS}", ("c", c))
        for s in range(2):
            base = (18 + s) if c < 4 else (22 + s)
            o = (c % 4) * 48
            lq.issue(f"ds_read2_b32 v[{w+4*s}:{w+4*s+1}], v{base} offset0:{o} offset1:{o+1}", ("c", c))
            lq.issue(f"ds_read2_b32 v[{w+4*s+2}:{w+4*s+3}], v{base} offset0:{o+2} offset1:{o+3}", ("c", c))
    cread(0); cread(1)
    for c in range(8):
        d = CD + (c % 2)*8; w = CW + (c % 2)*8; ac = CA + 4*c
        lq.wait([("c", c)])
        a(f"v_mfma_f32_16x16x32_bf16 v[{ac}:{ac+3}], v[{d}:{d+3}], v[{w}:{w+3}], 0")
        a(f"v_mfma_f32_16x16x32_bf16 v[{ac}:{ac+3}], v[{d+4}:{d+7}], v[{w+4}:{w+7}], v[{ac}:{ac+3}]")
        if c + 2 < 8: cread(c + 2)
    a("s_nop 7")
    T = 96
    for c in range(8):
        ac = CA + 4*c; t = T + (c % 4)*4
        a(f"v_pk_mul_f32 v[{t}:{t+1}], v[{ac}:{ac+1}], s[76:77]")
        a(f"v_pk_mul_f32 v[{t+2}:{t+3}], v[{ac+2}:{ac+3}], s[76:77]")
        for e in range(4): a(f"v_exp_f32 v{t+e}, v{t+e}")
        a(f"v_pk_add_f32 v[{t}:{t+1}], v[{t}:{t+1}], 1.0 op_sel_hi:[1,0]")
        a(f"v_pk_add_f32 v[{t+2}:{t+3}], v[{t+2}:{t+3}], 1.0 op_sel_hi:[1,0]")
        for e in range(4): a(f"v_rcp_f32 v{t+e}, v{t+e}")
        a(f"v_pk_mul_f32 v[{ac}:{ac+1}], v[{t}:{t+1}], v[{ac}:{ac+1}]")
        a(f"v_pk_mul_f32 v[{ac+2}:{ac+3}], v[{t+2}:{t+3}], v[{ac+2}:{ac+3}]")
    P = 112
    for r in range(4):
        for e in range(4):
            a(f"v_cvt_pk_bf16_f32 v{P+4*r+e}, v{CA+8*e+r}, v{CA+8*e+4+r}")
        a(f"s_mov_b32 s3, {r*16384}")
        a(f"buffer_store_dwordx4 v[{P+4*r}:{P+4*r+3}], v24, s[40:43], s3 offen sc1")
    stamp(13)
    a("s_waitcnt vmcnt(0)")
    stamp(14)
    a("s_barrier")
    a("s_cmp_lt_u32 s48, 4")
    a("s_cbranch_scc1 L_p2")
    vm.clear()
    w2batch(26, 6, False)
    a("s_waitcnt vmcnt(0)")
    a("s_barrier")
    a("s_branch L_fin")
    a.label("L_p2")
    a("s_cmp_lg_u32 s48, 0")
    a("s_cbranch_scc1 L_nopoll")
    a("v_readfirstlane_b32 s80, v252")
    a("v_readfirstlane_b32 s81, v253")
    a("s_nop 3")
    a("s_cmp_eq_u64 s[80:81], 0")
    a("s_cselect_b32 s80, s78, s80")
    a("s_cselect_b32 s81, s79, s81")
    a("s_lshl_b32 s3, s50, 7")
    a(f"s_add_u32 s3, s3, {FLAG_OFF}")
    a("v_lshlrev_b32 v20, 3, v2")
    a("v_add_u32 v20, s3, v20")
    a("s_lshl_b32 s75, s49, 3")
    a("s_add_u32 s3, s3, s75")
    a("v_mov_b32 v21, s3")
    a("v_mov_b32 v22, s80")
    a("v_mov_b32 v23, s81")
    a("s_mov_b64 exec, 1")
    a("buffer_store_dwordx2 v[22:23], v21, s[40:43], 0 offen sc1")
    a("s_mov_b64 exec, 0xff")
    a("s_mov_b32 s3, 0")
    a.label("L_poll")
    a("buffer_load_dwordx2 v[26:27], v20, s[40:43], 0 offen sc1")
    a("s_add_u32 s3, s3, 1")
    a("s_waitcnt vmcnt(0)")
    a("v_cmp_ne_u64 vcc, s[80:81], v[26:27]")
    a("s_cmp_gt_u32 s3, 0x100000")
    a("s_cbranch_scc1 L_polldone")
    a("s_nop 3")
    a("s_cbranch_vccnz L_poll")
    a.label("L_polldone")
    a("s_mov_b64 exec, -1")
    a.label("L_nopoll")
    a("s_and_b32 s18, s49, 1             ; hf")
    a("s_lshr_b32 s19, s49, 1            ; cb")
    a("s_lshl_b32 s3, s18, 2")
    a("s_add_u32 s3, s3, s48")
    a("s_lshl_b32 s3, s3, 15")
    a("s_lshl_b32 s75, s50, 18")
    a("s_add_u32 s3, s3, s75")
    a("v_lshlrev_b32 v16, 4, v2")
    a("v_add_u32 v16, s3, v16")
    a("v_add_u32 v17, 16384, v16")
    for qq in range(4):
        a(f"s_add_u32 s3, s19, {qq}")
        a("s_and_b32 s3, s3, 3")
        a(f"s_lshl_b32 s{60+qq}, s3, 12")
    a("s_and_b32 s3, s48, 1")
    a("s_lshl_b32 s3, s3, 6")
    a("v_xor_b32 v18, s3, v14            ; t=0 addr")
    a("s_lshl_b32 s3, s19, 15")
    a("v_add_u32 v18, s3, v18            ; + cb*32768")
    for t in range(8):
        a(f"v_xor_b32 v{8+t}, {32*t}, v18")
    for qq in range(1, 4):
        a(f"s_sub_u32 s{63+qq}, s{60+qq}, s{59+qq}")
        a(f"s_lshl_b32 s{63+qq}, s{63+qq}, 3")
    stamp(15)
    a("s_barrier")
    stamp(16)
    A2 = 96; NA2 = 7
    B2 = 152; NB2 = 8
    AC2 = 32
    vm2 = []
    def loadA(k):
        qq, ks = divmod(k, 4)
        for r2 in range(2):
            b = A2 + (k % NA2)*8 + 4*r2
            a(f"buffer_load_dwordx4 v[{b}:{b+3}], v{16+r2}, s[40:43], s{60+qq} offen offset:{ks*1024} sc1")
            vm2.append(k)
    def waitA(k):
        idx = max(i for i, t in enumerate(vm2) if t == k)
        a(f"s_waitcnt vmcnt({len(vm2)-idx-1})")
        del vm2[:idx+1]
    lq = LQ(a)
    def readB2(f):
        k, T_ = divmod(f, 8); qq, ks = divmod(k, 4)
        if ks == 0 and qq > 0:
            a(f"v_add_u32 v{8+T_}, s{63+qq}, v{8+T_}")
        b = B2 + (f % NB2)*4
        for h in range(2):
            lq.issue(f"ds_read_b64_tr_b16 v[{b+2*h}:{b+2*h+1}], v{8+T_} offset:{ks*8192 + h*1024}", ("B", f))
    for k in range(6): loadA(k)
    BD = 6
    for f in range(BD): readB2(f)
    for k in range(16):
        waitA(k)
        if k == 0: stamp(17)
        for T_ in range(8):
            f = k*8 + T_
            lq.wait([("B", f)])
            b = B2 + (f % NB2)*4
            for r2 in range(2):
                ab = A2 + (k % NA2)*8 + 4*r2
                ac = AC2 + (r2*8 + T_)*4
                cin = "0" if k == 0 else f"v[{ac}:{ac+3}]"
                a(f"v_mfma_f32_16x16x32_bf16 v[{ac}:{ac+3}], v[{b}:{b+3}], v[{ab}:{ab+3}], {cin}")
                if r2 == 0 and f + BD < 128: readB2(f + BD)
            if T_ == 0 and k + 6 < 16: loadA(k + 6)
    stamp(18)
    a("s_lshl_b32 s3, s48, 13")
    a(f"s_add_u32 s3, s3, {OST}")
    a("v_lshrrev_b32 v20, 1, v4")
    a("v_xor_b32 v20, v20, v6")
    a("v_lshlrev_b32 v20, 4, v20")
    a("v_and_b32 v21, 1, v4")
    a("v_lshl_add_u32 v20, v21, 3, v20")
    a("v_lshl_add_u32 v20, v6, 8, v20")
    a("v_add_u32 v20, s3, v20             ; T=0")
    for T_ in range(1, 8):
        a(f"v_xor_b32 v{20+T_}, {32*T_}, v20")
    a("v_xor_b32 v28, v6, v4")
    a("v_lshlrev_b32 v28, 4, v28")
    a("v_lshl_add_u32 v28, v4, 8, v28")
    a("v_add_u32 v28, s3, v28             ; n=0")
    for n in range(1, 4):
        a(f"v_xor_b32 v{28+n}, {64*n}, v28")
    a("s_lshl_b32 s3, s18, 2")
    a("s_add_u32 s3, s3, s48")
    a("s_lshl_b32 s3, s3, 15")
    a("s_lshl_b32 s75, s19, 8")
    a("s_add_u32 s3, s3, s75")
    a("v_lshlrev_b32 v16, 4, v6")
    a("v_lshl_add_u32 v16, v4, 10, v16")
    a("v_add_u32 v16, s3, v16")
    PK = 96
    for r2 in range(2):
        for T_ in range(8):
            ac = AC2 + (r2*8 + T_)*4; p = PK + (r2*8 + T_)*2
            a(f"v_cvt_pk_bf16_f32 v{p}, v{ac}, v{ac+1}")
            a(f"v_cvt_pk_bf16_f32 v{p+1}, v{ac+2}, v{ac+3}")
            a(f"ds_write_b64 v{20+T_}, v[{p}:{p+1}] offset:{r2*4096}")
    RB = 128
    for n in range(8):
        a(f"ds_read_b128 v[{RB+4*n}:{RB+4*n+3}], v{28+n%4} offset:{n*1024}")
    for n in range(8):
        if n: a(f"v_add_u32 v16, 4096, v16")
        a(f"s_waitcnt lgkmcnt({7-n})")
        a(f"buffer_store_dwordx4 v[{RB+4*n}:{RB+4*n+3}], v16, s[36:39], 0 offen")
    a.label("L_fin")
    if stamps:
        a("s_waitcnt vmcnt(0)")
        a("s_memtime s[20:21]")
        a("s_memrealtime s[22:23]")
        a("s_waitcnt lgkmcnt(0)")
        if dbgout:
            a("s_cmp_lg_u32 s48, 0")
            a("s_cbranch_scc1 L_end")
            a("s_and_b32 s3, s2, 0x7f")
            a("s_cmp_lg_u32 s3, 0x45")
            a("s_cbranch_scc1 L_end")
            a("s_lshr_b32 s3, s2, 7")
            a("s_lshl_b32 s3, s3, 5")
            a("v_mov_b32 v25, s3")
            a("s_mov_b64 exec, 1")
            a("s_sub_u32 s22, s22, s84")
            for i, r in enumerate([22, 20] + [SREGS[SMAP.index(k)] for k in (1, 10, 12, 14, 16, 18)]):
                if i >= 1: a(f"s_sub_u32 s{r}, s{r}, s82")
                a(f"v_mov_b32 v20, s{r}")
                a(f"buffer_store_dword v20, v25, s[44:47], 0 offen offset:{4*i}")
            a("s_branch L_end")
        a("s_and_b32 s3, s48, 3")
        a("s_cmp_lg_u32 s3, 0")
        a("s_cbranch_scc1 L_end")
        a("s_lshl_b32 s3, s2, 8")
        a("s_lshl_b32 s24, s48, 5")
        a("s_add_u32 s3, s3, s24")
        a(f"s_add_u32 s3, s3, {STAMP_OFF}")
        a("v_mov_b32 v25, s3")
        a("s_mov_b64 exec, 1")
        regs = [84, 22, 20] + SREGS
        for i, r in enumerate(regs):
            if i >= 2: a(f"s_sub_u32 s{r}, s{r}, s82")
            a(f"v_mov_b32 v20, s{r}")
            a(f"buffer_store_dword v20, v25, s[40:43], 0 offen offset:{4*i}")
    a.label("L_end")
    a("s_endpgm")
    return wrap_single(a.text(), 256, 512, 163840)

if __name__ == "__main__":
    open("k1.s", "w").write(gen(False))
    open("k1_st.s", "w").write(gen(True))
    open("k1_st_pt.s", "w").write(gen(True, pretouch=(6, "nt")))
    open("k1_st_pt2.s", "w").write(gen(True, pretouch=(6, "sc1")))
    open("k1_dbg.s", "w").write(gen(True, dbgout=True))
```

```python
import sys
from asmlib import *

SLOT = 53248
WB = 36864
HT = 125952
HTS = 592
WPS = 192
WP = 122880
MBX = HT + 59*HTS + 576
CNT = HT + 63*HTS + 576
GSTR = 4352
OST = 131072
FLAG_OFF = 0x1000000
STAMP_OFF = 0x4000000
SREGS = [86,88,90,92,94,96,98,100,4,6,8,10,12,14,16]

def slot_of(s): return s % 3
def w2addr(P):
    if P < 6: return P*8192
    if P < 8: return 106496 + (P-6)*8192
    if P < 15: return 49152 + (P-8)*8192
    return 122880

class LQ:
    def __init__(self, a): self.a = a; self.q = []
    def issue(self, instr, tag):
        self.a(instr); self.q.append(tag)
        assert len(self.q) <= 15, "too many outstanding lds ops"
    def wait(self, tags):
        idx = -1
        for i, t in enumerate(self.q):
            if t in tags: idx = i
        if idx < 0: return
        n = len(self.q) - idx - 1
        self.a(f"s_waitcnt lgkmcnt({n})")
        self.q = self.q[idx+1:]
    def waitall(self):
        self.a("s_waitcnt lgkmcnt(0)"); self.q = []

class VQ:
    def __init__(self, a): self.a = a; self.q = []
    def issue(self, instr, tag): self.a(instr); self.q.append(tag); assert len(self.q) <= 63
    def wait(self, tag):
        idx = max(i for i, t in enumerate(self.q) if t == tag)
        self.a(f"s_waitcnt vmcnt({len(self.q)-idx-1})")
        del self.q[:idx+1]
    def waitall(self): self.a("s_waitcnt vmcnt(0)"); self.q = []

def sigmul_ops(dst, bv, av, t):
    o = []
    o.append(f"v_pk_mul_f32 v[{t}:{t+1}], v[{bv}:{bv+1}], s[76:77]")
    o.append(f"v_pk_mul_f32 v[{t+2}:{t+3}], v[{bv+2}:{bv+3}], s[76:77]")
    for e in range(4): o.append(f"v_exp_f32 v{t+e}, v{t+e}")
    o.append(f"v_pk_add_f32 v[{t}:{t+1}], v[{t}:{t+1}], 1.0 op_sel_hi:[1,0]")
    o.append(f"v_pk_add_f32 v[{t+2}:{t+3}], v[{t+2}:{t+3}], 1.0 op_sel_hi:[1,0]")
    for e in range(4): o.append(f"v_rcp_f32 v{t+e}, v{t+e}")
    o.append(f"v_pk_mul_f32 v[{dst}:{dst+1}], v[{t}:{t+1}], v[{av}:{av+1}]")
    o.append(f"v_pk_mul_f32 v[{dst+2}:{dst+3}], v[{t+2}:{t+3}], v[{av+2}:{av+3}]")
    return o

def gen(stamps=False, codepf=True, X3P=6, W2AT=0, G2ST=False, LSET=6, ND1=6, WF='', LATEW=(0,1), PR=(3,3), NF=24, outflag="nt", DEFER=0, NPRE=7, cmap=0, blkx=False, exp=()):
    a = Asm()
    def stamp(i):
        if stamps:
            r = SREGS[i]; a(f"s_memtime s[{r}:{r+1}]")
    def spin_lds(addr, off, tmp, val, lab, sleep=1):
        a("s_mov_b32 s75, 0")
        a.label(lab)
        a(f"ds_read_b32 v{tmp}, v{addr} offset:{off}")
        a("s_add_u32 s75, s75, 1")
        a("s_waitcnt lgkmcnt(0)")
        a(f"v_cmp_ne_u32 vcc, {val}, v{tmp}")
        a("s_cmp_gt_u32 s75, 0x800000")
        a(f"s_cbranch_scc1 {lab}_d")
        a("s_nop 2")
        a(f"s_cbranch_vccz {lab}_d")
        a(f"s_sleep {sleep}")
        a(f"s_branch {lab}")
        a.label(lab + "_d")
    def poll(addr, off, wide, snap, tmp, saddr, lab):
        def fload():
            if wide: a(f"buffer_load_dwordx2 v[{tmp}:{tmp+1}], v{addr}, s[40:43], 0 offen offset:{off} sc1")
            else: a(f"buffer_load_dword v{tmp}, v{addr}, s[40:43], 0 offen offset:{off} sc1")
        def fcmp():
            if wide: a(f"v_cmp_eq_u64 vcc, v[{snap}:{snap+1}], v[{tmp}:{tmp+1}]")
            else: a(f"v_cmp_eq_u32 vcc, v{snap}, v{tmp}")
        a("s_mov_b64 exec, 0xff")
        a("s_mov_b32 s3, 0")
        a.label(lab)
        fload()
        a("s_add_u32 s3, s3, 1")
        a("s_waitcnt vmcnt(0)")
        fcmp()
        a("s_nop 4")
        a(f"s_cbranch_vccz {lab}_done")
        a(f"s_cmp_lt_u32 s3, {NF}")
        a(f"s_cbranch_scc1 {lab}")
        a(f"buffer_load_ubyte v{tmp+2}, v{saddr}, s[44:47], 0 offen sc1")
        a("s_waitcnt vmcnt(0)")
        a(f"v_cmp_ne_u32 s[72:73], 2, v{tmp+2}")
        a("s_nop 4")
        a("s_and_b64 s[72:73], s[72:73], vcc")
        a(f"s_cbranch_scc0 {lab}_done")
        a("s_sleep 8")
        a("s_cmp_lt_u32 s3, 0x80000")
        a(f"s_cbranch_scc1 {lab}")
        a.label(lab + "_done")
        a("s_mov_b64 exec, -1")
    a.label("L_start")
    if stamps:
        a("s_memtime s[82:83]")
        a("s_memrealtime s[84:85]")
    a("""
    s_cmp_ge_u32 s2, 256
    s_cbranch_scc1 L_end
    s_load_dwordx8 s[4:11], s[0:1], 0     ; x, w1, dw, w2
    s_load_dwordx4 s[12:15], s[0:1], 32
    s_load_dwordx2 s[16:17], s[0:1], 48   ; ws
    v_lshrrev_b32 v1, 6, v0
    v_and_b32 v2, 63, v0                  ; lane
    s_and_b32 s54, s2, 7                  ; xcd
    v_readfirstlane_b32 s48, v1
    s_lshr_b32 s51, s2, 3
    s_and_b32 s49, s51, 7                 ; ct
    s_lshr_b32 s51, s51, 3                ; rt&3
    s_lshl_b32 s50, s54, 2
    s_add_u32 s50, s50, s51               ; rt
    s_lshr_b32 s55, s50, 4                ; batch
    s_and_b32 s56, s50, 15
    s_mul_i32 s56, s56, 250               ; row0
    s_sub_u32 s52, s56, 15
    s_mul_i32 s57, s55, 4096000
    s_add_u32 s53, s49, s50
    s_and_b32 s53, s53, 3                 ; rot r
    s_mov_b32 s22, 4096000
    s_mov_b32 s23, 0x20000
    s_mov_b32 s26, 1048576
    s_mov_b32 s27, 0x20000
    s_lshl_b32 s58, s49, 7                ; ct*128
    s_and_b32 s18, s48, 3                 ; w & 3
    v_lshrrev_b32 v4, 4, v2               ; l>>4  (q / g)
    v_and_b32 v6, 15, v2                  ; l&15
    s_cmp_lt_u32 s48, 4
    s_cbranch_scc1 L_compute
    """)
    def build_srds1():
        a("""
        s_add_u32 s20, s4, s57
        s_addc_u32 s21, s5, 0
        s_mov_b32 s24, s6
        s_mov_b32 s25, s7
        """)
    def build_srds2():
        a("""
        s_mov_b32 s28, s10
        s_mov_b32 s29, s11
        s_mov_b32 s30, 524288
        s_mov_b32 s31, 0x20000
        s_mov_b32 s32, s8
        s_mov_b32 s33, s9
        s_mov_b32 s34, 31744
        s_mov_b32 s35, 0x20000
        s_lshl_b32 s59, s56, 10
        s_add_u32 s59, s59, s57
        s_add_u32 s36, s12, s59
        s_addc_u32 s37, s13, 0
        s_mov_b32 s38, 256000
        s_mov_b32 s39, 0x20000
        s_mov_b32 s40, s16
        s_mov_b32 s41, s17
        s_mov_b32 s42, 0x8000000
        s_mov_b32 s43, 0x20000
        s_mov_b32 s44, s14
        s_mov_b32 s45, s15
        s_mov_b32 s46, 256
        s_mov_b32 s47, 0x20000
        s_mov_b32 s76, 0xbfb8aa3b
        s_mov_b32 s77, 0xbfb8aa3b
        s_and_b32 s19, s49, 6           ; 2*cb
        """)
    a("v_lshlrev_b32 v7, 1, v4")
    a("v_xor_b32 v7, v7, v6            ; c8 for j=0,1")
    a("v_lshrrev_b32 v8, 3, v7")
    a("v_and_b32 v9, 7, v7")
    a("v_lshlrev_b32 v9, 4, v9")
    a("v_lshl_add_u32 v9, v8, 10, v9")
    a("s_lshl_b32 s19, s18, 4")
    a("v_add_u32 v8, s19, v4           ; kr j=0")
    a("v_lshl_add_u32 v9, v8, 11, v9")
    a("v_add_u32 v25, s58, v9")
    a("v_add_u32 v26, 8192, v25")
    a("v_xor_b32 v27, 1024, v25")
    a("v_add_u32 v27, 16384, v27")
    a("v_add_u32 v28, 8192, v27")
    a("s_lshl_b32 s78, s18, 12")
    a(f"s_add_u32 s78, s78, {WB}")
    a("v_lshrrev_b32 v3, 3, v2   ; l>>3")
    a("v_and_b32 v5, 7, v2")
    a("v_add_u32 v10, s52, v3")
    a("s_lshl_b32 s3, s18, 2")
    a("v_add_u32 v11, s3, v4")
    a("v_and_b32 v11, 7, v11           ; swz")
    a("v_xor_b32 v11, v11, v5")
    a("v_lshlrev_b32 v11, 4, v11")
    a("v_lshl_add_u32 v10, v10, 10, v11")
    a("s_lshr_b32 s3, s49, 2           ; hb")
    a("s_mul_i32 s3, s3, 18")
    a("s_add_u32 s79, s3, s18           ; p_0")
    vq = VQ(a)
    if blkx: a("s_and_b32 s73, s54, 1")
    def setup(s):
        a(f"s_add_u32 s3, s53, {s}")
        a(f"s_and_b32 s3, s3, 3")
        blk = s >> 2
        if cmap == 0:
            if blk: a("s_add_u32 s3, s3, 4")
            sh = 2
        elif cmap == 1:
            a("s_lshl_b32 s3, s3, 1")
            if blk: a("s_add_u32 s3, s3, 1")
            sh = 0
        elif cmap == 2:
            a("s_and_b32 s75, s3, 2")
            a("s_add_u32 s3, s3, s75")
            if blk: a("s_add_u32 s3, s3, 2")
            sh = 1
        if blkx:
            a(f"s_lshl_b32 s75, s73, {sh}")
            a("s_xor_b32 s3, s3, s75")
        a(f"s_lshl_b32 s{69+s%2}, s3, 17")
        a(f"s_lshl_b32 s{71+s%2}, s3, 7")
    def xaddr(j):
        if j: a(f"s_add_u32 s79, s79, 4")
        if j >= 4:
            a("s_sub_u32 s75, s79, 36")
            a("s_cmp_ge_u32 s79, 36")
            a("s_cselect_b32 s79, s75, s79")
        a(f"s_lshl_b32 s{60+j}, s79, 10")
        a(f"s_lshl_b32 s75, s79, 13")
        a(f"v_add_u32 v{16+j}, s75, v10")
        a(f"v_min_u32 v{16+j}, 0x80000000, v{16+j}")
    def issue(s, lo=0, hi=13, first=False):
        if lo == 0 and hi > 0 and not first: setup(s)
        base = slot_of(s) * SLOT
        for k in range(lo, hi):
            if k < 4:
                a(f"s_add_u32 m0, s78, {base + k*1024}")
                a("s_nop 0")
                if not ("now0" in exp and s == 0): vq.issue(f"buffer_load_dwordx4 v{25+k}, s[24:27], s{69+s%2} offen {WF} lds", ("D", s))
            else:
                j = k - 4
                if first: xaddr(j)
                a(f"s_add_u32 m0, s{60+j}, {base}")
                a("s_nop 0")
                if not (("nox0" in exp and s == 0) or ("halfx0" in exp and s == 0 and j >= 5)): vq.issue(f"buffer_load_dwordx4 v{16+j}, s[20:23], s{71+s%2} offen nt lds", ("D", s))
    def w2p(PGs, vreg=47):
        for PG in PGs:
            P, sub = divmod(PG, 2)
            a(f"s_add_u32 m0, s74, {w2addr(P) + sub*4096}")
            a(f"s_add_u32 s75, s19, {P & 7}")
            a("s_and_b32 s75, s75, 7")
            a("s_lshl_b32 s75, s75, 16")
            a(f"s_add_u32 s75, s75, {sub*16384 + (P >> 3)*32768}")
            vq.issue(f"buffer_load_dwordx4 v{vreg}, s[28:31], s75 offen lds", ("W2",))
    setup(0)
    a("s_waitcnt lgkmcnt(0)")
    build_srds1()
    stamp(0)
    issue(0, 0, 12, first=True)
    xaddr(8)
    build_srds2()
    a("v_lshrrev_b32 v7, 1, v2")
    a("v_and_b32 v8, 1, v2")
    a("v_lshlrev_b32 v9, 10, v7")
    a("v_lshl_add_u32 v9, v8, 2, v9")
    a("s_lshl_b32 s3, s18, 4")
    a("s_add_u32 s3, s3, s58")
    a("v_add_u32 v30, s3, v9")
    a(f"s_mul_i32 s3, s50, {GSTR}")
    a(f"s_add_u32 s3, s3, {FLAG_OFF}")
    a("v_lshlrev_b32 v39, 4, v5")
    a("v_add_u32 v39, s3, v39")
    a("s_and_b32 s3, s49, 1")
    a("s_lshl_b32 s75, s51, 1")
    a("s_add_u32 s3, s3, s75")
    a("s_lshl_b32 s3, s3, 2")
    a("s_add_u32 s3, s3, s18")
    a("s_lshl_b32 s3, s3, 14")
    a("s_lshl_b32 s75, s19, 7")
    a("s_add_u32 s3, s3, s75")
    a("v_lshlrev_b32 v9, 10, v7")
    a("v_lshl_add_u32 v9, v8, 7, v9")
    a("v_add_u32 v32, s3, v9")
    a("s_lshl_b32 s3, s50, 3")
    a("v_add_u32 v33, s3, v5")
    a("v_cmp_eq_u32 s[80:81], s49, v2")
    def late_setup():
        a(f"s_mul_i32 s3, s18, {4*WPS}")
        a(f"s_add_u32 s3, s3, {WP}")
        a(f"v_mul_u32_u24 v31, {2*WPS}, v8")
        a("v_lshl_add_u32 v31, v7, 1, v31")
        a("v_add_u32 v31, s3, v31")
        a("v_lshlrev_b32 v9, 4, v2")
        a("v_add_u32 v29, s3, v9")
        for i in range(4): a(f"v_mov_b32 v{48+i}, 0")
        for sx in range(2):
            a(f"v_lshlrev_b32 v8, 3, v4")
            a(f"v_sub_u32 v8, v8, v6")
            a(f"v_add_u32 v8, {32*sx+8}, v8      ; u+8")
            a("v_and_b32 v9, 1, v8")
            a("v_mul_u32_u24 v9, 94, v9")
            a("v_lshl_add_u32 v9, v8, 1, v9")
            a("v_cmp_gt_u32 vcc, 39, v8")
            a("s_nop 1")
            a("v_cndmask_b32 v9, 0, v9, vcc")
            a(f"v_add_u32 v{42+sx}, s3, v9")
        a("s_lshr_b32 s3, s18, 1")
        a("s_lshl_b32 s3, s3, 2")
        a("v_add_u32 v8, s3, v4")
        a("v_lshlrev_b32 v8, 1, v8")
        a("v_xor_b32 v8, v8, v6            ; c8")
        a("v_lshlrev_b32 v8, 4, v8")
        a("s_lshl_b32 s3, s18, 2")
        a("v_add_u32 v9, s3, v4")
        a("v_lshl_add_u32 v8, v9, 10, v8")
        a("s_lshl_b32 s3, s19, 7            ; cb*256")
        a("v_add_u32 v47, s3, v8")
        a("s_lshl_b32 s74, s18, 10         ; lw*1024")
        a(f"s_mul_i32 s3, s18, {8*HTS}")
        a(f"s_add_u32 s3, s3, {HT}")
        a("v_lshlrev_b32 v12, 5, v6")
        a("v_add_u32 v12, s3, v12")
        a("v_and_b32 v13, 1, v4")
        a("v_lshl_add_u32 v13, v13, 4, v12")
        a("v_add_u32 v13, 64, v13            ; s=1 addr")
        a("v_lshl_add_u32 v12, v4, 4, v12    ; s=0 addr")
        a("s_lshl_b32 s3, s50, 18")
        a("s_lshl_b32 s75, s49, 11")
        a("s_add_u32 s3, s3, s75")
        a("s_lshl_b32 s75, s18, 8")
        a("s_add_u32 s3, s3, s75")
        a("v_lshlrev_b32 v14, 16, v4")
        a("v_lshl_add_u32 v14, v6, 4, v14")
        a("v_add_u32 v14, s3, v14")
        a(f"v_mov_b32 v38, {CNT}")
        a("v_mov_b32 v45, 1")
    TW = 128
    def toep(rho):
        a(f"ds_write_b16 v31, v{34+rho} offset:16")
        a(f"ds_write_b16 v31, v{34+rho} offset:110")
        a(f"ds_write_b16_d16_hi v31, v{34+rho} offset:{WPS+16}")
        a(f"ds_write_b16_d16_hi v31, v{34+rho} offset:{WPS+110}")
        for c in range(4):
            lc = 4*rho + c; o = c * (WPS // 4)
            for sx in range(2):
                w = TW + 8*lc + 4*sx
                a(f"ds_read2_b32 v[{w}:{w+1}], v{42+sx} offset0:{o} offset1:{o+1}")
                a(f"ds_read2_b32 v[{w+2}:{w+3}], v{42+sx} offset0:{o+2} offset1:{o+3}")
            a("s_waitcnt lgkmcnt(10)")
    issue(0, 12, 13)
    issue(1, 0, ND1)
    vq.wait(("D", 0)); stamp(1); a("s_barrier")
    issue(1, ND1, 13); issue(2, 0, 6)
    vq.wait(("D", 1)); a("s_barrier")
    issue(2, 6, 13); issue(3)
    for i, o in enumerate((0, 8, 64, 72)):
        vq.issue(f"buffer_load_dword v{34+i}, v30, s[32:35], 0 offen offset:{o}", ("dw",))
    a("s_mov_b64 exec, 0xff")
    vq.issue("buffer_load_dwordx4 v[120:123], v39, s[40:43], 0 offen sc1", ("snap",))
    a("s_mov_b64 exec, -1")
    for s in range(2, 8):
        vq.wait(("D", s))
        if s in (4, 5, 7): stamp({4: 2, 5: 3, 7: 4}[s])
        a("s_barrier")
        if s + 2 <= 7: issue(s + 2)
        if s == LSET: late_setup()
        if s == 5:
            a("s_mov_b64 exec, 0xffffffff")
            vq.issue("buffer_load_dword v44, v32, s[28:31], 0 offen", ("pf",))
            a("s_mov_b64 exec, -1")
            a("s_getreg_b32 s3, hwreg(HW_REG_XCC_ID)")
            a("s_and_b32 s3, s3, 15")
            a("s_lshl_b32 s3, s3, 8")
            a("s_add_u32 s3, s3, 1")
            a("v_add_u32 v124, s3, v122")
            a("s_mov_b64 exec, s[80:81]")
            vq.issue("buffer_store_dword v124, v39, s[40:43], 0 offen offset:8", ("hello",))
            a("s_mov_b64 exec, -1")
        if s == 6:
            a("s_mov_b32 exec_hi, 0xffff")
            a("ds_write_b128 v29, v[48:51]")
            a("s_mov_b64 exec, -1")
            toep(0)
    w2p(list(range(12, 16)) + list(range(0, 12)))
    toep(1)
    a("v_add_u32 v16, 1, v120")
    a("v_add_u32 v17, 1, v121")
    a("v_mov_b32 v18, 2")
    a(f"v_lshrrev_b32 v7, 1, v5")
    a(f"v_mul_u32_u24 v7, {HTS}, v7")
    a("v_and_b32 v8, 1, v5")
    a("v_lshl_add_u32 v7, v8, 3, v7")
    a("s_mov_b64 exec, 0xff")
    a(f"v_add_u32 v7, {MBX}, v7")
    a("ds_write_b64 v7, v[120:121]")
    a("s_mov_b64 exec, -1")
    a("s_waitcnt lgkmcnt(0)")
    a("s_setprio 2")
    CD = 48; CA = 80; CT = 112
    def flag(h):
        if h == 1:
            a("s_mov_b64 exec, 0xff")
            vq.issue("buffer_load_dword v125, v39, s[40:43], 0 offen offset:8 sc1", ("S", 1))
        a("s_mov_b64 exec, 1")
        vq.wait(("S", h))
        a(f"ds_add_rtn_u32 v46, v38, v45 offset:{4*h}")
        a("s_waitcnt lgkmcnt(0)")
        a("v_cmp_eq_u32 vcc, 3, v46")
        a("s_nop 4")
        a(f"s_cbranch_vccz L_noflag{h}")
        a("s_mov_b64 exec, s[80:81]")
        a(f"buffer_store_dword v{16+h}, v39, s[40:43], 0 offen offset:{4*h}")
        if h == 1:
            a("s_mov_b64 exec, 0xff")
            a("v_cmp_ne_u32 vcc, v124, v125")
            a("s_nop 4")
            a(f"s_cbranch_vccz L_noflag{h}")
            a("s_mov_b64 exec, s[80:81]")
            a("buffer_store_byte v18, v33, s[44:47], 0 offen sc1")
        a.label(f"L_noflag{h}")
        a("s_mov_b64 exec, -1")
        stamp(7 + 3*h)
    def conv_half(h):
        lq = LQ(a)
        CP = 64 if h == 0 else 48
        def cread(c):
            d = CD + (c % 4)*8
            off = (32*h + c) * HTS
            lq.issue(f"ds_read_b128 v[{d}:{d+3}], v12 offset:{off}", ("c", c))
            lq.issue(f"ds_read_b128 v[{d+4}:{d+7}], v13 offset:{off}", ("c", c))
        def mf(c):
            d = CD + (c % 4)*8; w = TW + 8*(8*h + c); ac = CA + 4*c
            lq.wait([("c", c)])
            a(f"v_mfma_f32_16x16x32_bf16 v[{ac}:{ac+3}], v[{d}:{d+3}], v[{w}:{w+3}], 0")
            a(f"v_mfma_f32_16x16x32_bf16 v[{ac}:{ac+3}], v[{d+4}:{d+7}], v[{w+4}:{w+7}], v[{ac}:{ac+3}]")
            if c + 4 < 8: cread(c + 4)
        for c in range(4): cread(c)
        for c in range(8): mf(c)
        for c in range(8):
            ac = CA + 4*c
            for o in sigmul_ops(ac, ac, ac, CT + (c % 2)*4): a(o)
        for r in range(4):
            for e in range(4):
                a(f"v_cvt_pk_bf16_f32 v{CP+4*r+e}, v{CA+8*e+r}, v{CA+8*e+4+r}")
            a(f"s_mov_b32 s3, {r*16384}")
            vq.issue(f"buffer_store_dwordx4 v[{CP+4*r}:{CP+4*r+3}], v14, s[40:43], s3 offen offset:{1024*h} sc1", ("S", h))
        stamp(6 + 3*h)
    a("s_barrier")
    stamp(5)
    conv_half(0)
    toep(2)
    flag(0)
    toep(3)
    a("s_waitcnt lgkmcnt(0)")
    a("s_barrier")
    stamp(8)
    conv_half(1)
    flag(1)
    a("s_cmp_lg_u32 s18, 0")
    a("s_cbranch_scc1 L_lnopoll")
    poll(39, 4, False, 121, 64, 33, "L_pollB")
    a.label("L_lnopoll")
    stamp(11)
    a("s_barrier")
    a("s_branch L_fin")

    a.label("L_compute")
    a("s_waitcnt lgkmcnt(0)")
    build_srds1(); build_srds2()
    for i in range(4): a(f"v_mov_b32 v{252+i}, 0")
    a(f"v_mov_b32 v15, {CNT}")
    a("ds_write_b128 v15, v[252:255]")
    if codepf:
        a("s_cmp_lg_u32 s48, 1")
        a("s_cbranch_scc1 L_nopf")
        a("s_getpc_b64 s[78:79]")
        a.label("L_pc")
        a("s_sub_u32 s78, s78, L_pc-L_start")
        a("s_subb_u32 s79, s79, 0")
        a("s_lshr_b32 s3, s2, 3")
        a("s_lshl_b32 s3, s3, 10")
        a("v_lshlrev_b32 v251, 7, v2")
        a("v_add_u32 v251, s3, v251")
        a("v_min_u32 v251, L_end-L_start, v251")
        a("s_mov_b64 exec, 0xff")
        a("global_load_dword v252, v251, s[78:79]")
        a("s_mov_b64 exec, -1")
        a.label("L_nopf")
    a("s_lshr_b32 s60, s48, 1          ; wr")
    a("s_and_b32 s61, s48, 1           ; wc")
    a("s_mul_i32 s3, s60, 144")
    a("v_add_u32 v7, s3, v6")
    a("v_lshrrev_b32 v8, 1, v6")
    a("v_xor_b32 v8, v8, v4")
    a("v_lshlrev_b32 v8, 4, v8")
    a("v_lshl_add_u32 v8, v7, 7, v8")
    a("v_xor_b32 v9, 64, v8")
    a("v_lshrrev_b32 v7, 2, v6            ; i>>2")
    a("v_and_b32 v10, 1, v4")
    a("v_lshl_add_u32 v10, v10, 2, v7     ; w")
    a("v_lshlrev_b32 v10, 5, v10")
    a("v_and_b32 v11, 3, v6")
    a("v_lshl_add_u32 v10, v11, 3, v10    ; + (i&3)*8")
    a("v_lshl_add_u32 v7, v4, 3, v7       ; 8g + (i>>2)")
    a("v_lshl_add_u32 v224, v7, 8, v10")
    for t in range(1, 8): a(f"v_xor_b32 v{224+t}, {32*t}, v224")
    a("s_lshl_b32 s3, s61, 5")
    a("v_xor_b32 v10, s3, v224             ; t = wc")
    a(f"v_add_u32 v10, {WB}, v10")
    a("v_xor_b32 v11, 64, v10             ; a1: t^2")
    a("v_xor_b32 v12, 128, v10            ; b0: t^4")
    a("v_xor_b32 v13, 192, v10            ; b1: t^6")
    a(f"v_mov_b32 v15, {CNT}")
    a("v_mov_b32 v5, 1")
    a("s_lshr_b32 s3, s18, 1")
    a("s_lshl_b32 s3, s3, 2")
    a("v_add_u32 v3, s3, v4")
    a("v_lshlrev_b32 v3, 1, v3")
    a("v_xor_b32 v3, v3, v6            ; c8")
    a("v_lshlrev_b32 v3, 4, v3")
    a("s_lshl_b32 s3, s18, 2")
    a("v_add_u32 v7, s3, v4")
    a("v_lshl_add_u32 v3, v7, 10, v3")
    a("s_lshl_b32 s3, s19, 7            ; cb*256")
    a("v_add_u32 v3, s3, v3")
    a("s_lshl_b32 s74, s18, 10")
    a("s_lshl_b32 s3, s61, 4")
    a("v_add_u32 v7, s3, v6")
    a(f"v_mul_u32_u24 v7, {HTS}, v7")
    a("v_lshl_add_u32 v7, v4, 3, v7")
    a("s_mul_i32 s3, s60, 288")
    a(f"s_add_u32 s3, s3, {HT}")
    a("v_add_u32 v14, s3, v7")
    a("s_and_b32 s60, s49, 1             ; hf")
    a("s_lshr_b32 s61, s49, 1            ; cb")
    a("s_lshl_b32 s3, s60, 2")
    a("s_add_u32 s3, s3, s48")
    a("s_lshl_b32 s59, s3, 15")
    a("s_lshl_b32 s75, s50, 18")
    a("s_add_u32 s3, s59, s75")
    a("v_lshlrev_b32 v232, 4, v2")
    a("v_add_u32 v232, s3, v232")
    a("v_add_u32 v233, 16384, v232")
    for j in range(8):
        a(f"s_add_u32 s3, s19, {j}")
        a("s_and_b32 s3, s3, 7")
        a(f"s_lshl_b32 s{62+j}, s3, 11")
    a(f"s_mul_i32 s3, s50, {GSTR}")
    a(f"s_add_u32 s3, s3, {FLAG_OFF}")
    a("v_and_b32 v7, 7, v2")
    a("v_lshlrev_b32 v234, 4, v7")
    a("v_add_u32 v234, s3, v234")
    a("s_lshl_b32 s3, s50, 3")
    a("v_add_u32 v248, s3, v7")
    a("v_lshrrev_b32 v249, 1, v7")
    a(f"v_mul_u32_u24 v249, {HTS}, v249")
    a("v_and_b32 v7, 1, v7")
    a("v_lshl_add_u32 v249, v7, 3, v249")
    a(f"v_add_u32 v249, {MBX}, v249")
    a("s_lshl_b32 s3, s48, 13")
    a(f"s_add_u32 s3, s3, {OST}")
    a("v_lshrrev_b32 v235, 1, v4")
    a("v_xor_b32 v235, v235, v6")
    a("v_lshlrev_b32 v235, 4, v235")
    a("v_and_b32 v7, 1, v4")
    a("v_lshl_add_u32 v235, v7, 3, v235")
    a("v_lshl_add_u32 v235, v6, 8, v235")
    a("v_add_u32 v235, s3, v235")
    for T_ in range(1, 8): a(f"v_xor_b32 v{235+T_}, {32*T_}, v235")
    a("v_xor_b32 v243, v6, v4")
    a("v_lshlrev_b32 v243, 4, v243")
    a("v_lshl_add_u32 v243, v4, 8, v243")
    a("v_add_u32 v243, s3, v243")
    for n in range(1, 4): a(f"v_xor_b32 v{243+n}, {64*n}, v243")
    a("s_lshl_b32 s75, s61, 8")
    a("s_add_u32 s3, s59, s75")
    a("v_lshlrev_b32 v247, 4, v6")
    a("v_lshl_add_u32 v247, v4, 10, v247")
    a("v_add_u32 v247, s3, v247")
    ACC = 16; AR = 160; NA = 8; BR = 192
    def acc(rt, c): b = ACC + (rt*4 + c)*4; return f"v[{b}:{b+3}]"
    def areg(n): b = AR + (n % NA)*4; return f"v[{b}:{b+3}]"
    def breg(kk, c, h=None):
        b = BR + (kk % 2)*16 + c*4
        if h is None: return f"v[{b}:{b+3}]"
        return f"v[{b+2*h}:{b+2*h+1}]"
    lq = LQ(a)
    NSTEP = 144
    def readA(n):
        s, r = divmod(n % NSTEP if n < NSTEP else n - 18, 18); ks, rt = divmod(r, 9)
        lq.issue(f"ds_read_b128 {areg(n)}, v{8+ks} offset:{rt*2048}", ("A", n))
    def readB(kk, c):
        ks = kk % 2
        for h in range(2):
            lq.issue(f"ds_read_b64_tr_b16 {breg(kk,c,h)}, v{10+c} offset:{ks*8192 + h*1024}", ("B", kk, c))
    def switch_slot(s):
        d = (slot_of(s) - slot_of(s-1)) * SLOT
        for r in range(8, 14):
            if d > 0: a(f"v_add_u32 v{r}, {d}, v{r}")
            else: a(f"v_subrev_u32 v{r}, {-d}, v{r}")
    PD = 6; BARP = 4
    stamp(0)
    a("s_waitcnt lgkmcnt(0)")
    a("s_barrier")
    stamp(1)
    for c in range(4): readB(0, c)
    for n in range(4): readA(n)
    nextA = 4
    for n in range(NSTEP):
        s, r = divmod(n, 18); ks, rt = divmod(r, 9)
        kk = s*2 + ks
        if r == 18 - BARP and s < 7:
            lq.waitall()
            a("s_barrier")
            switch_slot(s + 1)
            if s + 1 in (4, 5, 7) and not G2ST: stamp({4: 2, 5: 3, 7: 4}[s+1])
        lim_stage = s + 1 if r >= 18 - BARP else s
        def canA(m): return m < NSTEP and m // 18 <= lim_stage and m < n + NA
        pend = []
        if ks == 0 and 2 <= rt <= 5: pend.append(("B", kk+1, rt-2))
        if ks == 1 and s < 7 and r >= 18 - BARP and r < 18 - BARP + 2:
            o = (r - (18 - BARP)) * 2
            pend.append(("B", kk+1, o)); pend.append(("B", kk+1, o+1))
        cnt = 0
        while canA(nextA) and nextA <= n + PD + (1 if (r >= 9 or s == 7) else 0) and cnt < 2:
            pend.append(("A", nextA)); nextA += 1; cnt += 1
        need = [("A", n)] + ([("B", kk, c) for c in range(4)] if rt == 0 else [])
        lq.wait(need)
        cs = (0, 2) if (DEFER and s == 7) else (0, 1, 2, 3)
        for ci, c in enumerate(cs):
            cin = "0" if kk == 0 else acc(rt, c)
            a(f"v_mfma_f32_16x16x32_bf16 {acc(rt,c)}, {areg(n)}, {breg(kk,c)}, {cin}")
            rem = len(cs) - ci
            k = (len(pend) + rem - 1) // rem if pend else 0
            for _ in range(k):
                p = pend.pop(0)
                if p[0] == "A": readA(p[1])
                else: readB(p[1], p[2])
        if r == 18 - BARP - 1:
            assert nextA >= min(NSTEP, (s+1)*18), (n, nextA)
    stamp(5)
    def glu(j):
        def wr(rt):
            av = ACC + (rt*4 + j)*4
            lq.issue(f"ds_write_b64 v14, v[{av}:{av+1}] offset:{j*32*HTS + rt*32}", ("w", j, rt))
        for rt in range(9):
            av = ACC + (rt*4 + j)*4; bv = ACC + (rt*4 + 2 + j)*4
            if j == 1 and rt == W2AT: w2p(range(16, 30), 3)
            for o in sigmul_ops(bv, bv, av, bv): a(o)
            a(f"v_cvt_pk_bf16_f32 v{av}, v{bv}, v{bv+1}")
            a(f"v_cvt_pk_bf16_f32 v{av+1}, v{bv+2}, v{bv+3}")
            if not LATEW[j]: wr(rt)
        if LATEW[j]:
            for rt in range(9): wr(rt)
        lq.waitall()
    a("s_nop 3")
    glu(0)
    stamp(6)
    a("s_barrier")
    if DEFER:
        nextA = NSTEP + 6
        for n in range(NSTEP, NSTEP + 18):
            ks, rt = divmod(n - NSTEP, 9); kk = 14 + ks
            lq.wait([("A", n)])
            for c in (1, 3):
                a(f"v_mfma_f32_16x16x32_bf16 {acc(rt,c)}, {areg(n)}, {breg(kk,c)}, {acc(rt,c)}")
                if nextA < NSTEP + 18 and nextA < n + NA: readA(nextA); nextA += 1
            if n == NSTEP + 14:
                lq.waitall()
                a("s_mov_b64 exec, 1")
                lq.issue("ds_add_u32 v15, v5 offset:12", ("e0",))
                a("s_mov_b64 exec, -1")
        a("s_nop 3")
    assert not DEFER
    vq = VQ(a)
    stamp(7)
    lq.issue("ds_read_b64 v[250:251], v249", ("mb",))
    glu(1)
    stamp(8)
    a("s_barrier")
    stamp(9)
    w2p([30, 31], 3)
    a(f"s_setprio {PR[1]}")
    a("s_cmp_lg_u32 s48, 0")
    a("s_cbranch_scc1 L_waitgo")
    a(f"s_setprio {PR[0]}")
    poll(234, 0, True, 250, 28, 248, "L_pollA")
    a("ds_write_b32 v15, v5 offset:8")
    a("s_branch L_go")
    a.label("L_waitgo")
    spin_lds(15, 8, 7, 1, "L_wg", sleep=1)
    a.label("L_go")
    a("s_waitcnt lgkmcnt(0)")
    stamp(10)
    A2 = 96; NA2 = 8; B2 = 160; NB2 = 8; AC2 = 32
    vq = VQ(a)
    def loadA(P):
        h, j = divmod(P, 8)
        for r2 in range(2):
            b = A2 + (P % NA2)*8 + 4*r2
            vq.issue(f"buffer_load_dwordx4 v[{b}:{b+3}], v{232+r2}, s[40:43], s{62+j} offen offset:{h*1024} sc1", P)
    lq = LQ(a)
    def readB2(f):
        P, T_ = divmod(f, 8)
        ad = w2addr(P)
        if P == 1: a(f"v_add_u32 v{16+T_}, 65536, v{224+T_}")
        reg = 224 + T_ if ad < 65536 else 16 + T_
        ad %= 65536
        b = B2 + (f % NB2)*4
        for h in range(2):
            lq.issue(f"ds_read_b64_tr_b16 v[{b+2*h}:{b+2*h+1}], v{reg} offset:{ad + h*1024}", ("B", f))
    for P in range(6): loadA(P)
    nextL = 6
    BD = 6
    for f in range(BD): readB2(f)
    a("s_setprio 0")
    for P in range(16):
        if P == X3P:
            a("s_barrier")
            stamp(12)
        vq.wait(P)
        if P == 0: stamp(11)
        if G2ST and P in (2, 4, 5, 8, 9, 10, 12, 14): stamp({2:0, 4:1, 5:2, 8:3, 9:4, 10:5, 12:6, 14:7}[P])
        for T_ in range(8):
            f = P*8 + T_
            lq.wait([("B", f)])
            b = B2 + (f % NB2)*4
            for r2 in range(2):
                ab = A2 + (P % NA2)*8 + 4*r2
                ac = AC2 + (r2*8 + T_)*4
                cin = "0" if P == 0 else f"v[{ac}:{ac+3}]"
                a(f"v_mfma_f32_16x16x32_bf16 v[{ac}:{ac+3}], v[{b}:{b+3}], v[{ab}:{ab+3}], {cin}")
                if r2 == 0 and f + BD < 128: readB2(f + BD)
            if T_ % 2 == 0 and nextL < 16 and nextL < P + NA2 and (nextL < 8 or P >= X3P):
                loadA(nextL); nextL += 1
    stamp(13)
    a("s_nop 3")
    PK = 96; RB = 128
    lq = LQ(a)
    def ostore(n):
        if n: a(f"v_add_u32 v247, 4096, v247")
        lq.wait([("r", n)])
        a(f"buffer_store_dwordx4 v[{RB+4*n}:{RB+4*n+3}], v247, s[36:39], 0 offen {outflag}")
    for r2 in range(2):
        for T_ in range(8):
            ac = AC2 + (r2*8 + T_)*4; p = PK + (r2*8 + T_)*2
            a(f"v_cvt_pk_bf16_f32 v{p}, v{ac}, v{ac+1}")
            a(f"v_cvt_pk_bf16_f32 v{p+1}, v{ac+2}, v{ac+3}")
            if r2 == 1 and T_ >= 3 and T_ < 7: ostore(T_ - 3)
            lq.issue(f"ds_write_b64 v{235+T_}, v[{p}:{p+1}] offset:{r2*4096}", ("w", r2, T_))
        for n in range(4*r2, 4*r2+4):
            lq.issue(f"ds_read_b128 v[{RB+4*n}:{RB+4*n+3}], v{243+n%4} offset:{n*1024}", ("r", n))
    for n in range(4, 8): ostore(n)
    a.label("L_fin")
    if stamps:
        a("s_waitcnt vmcnt(0)")
        a("s_memtime s[20:21]")
        a("s_memrealtime s[22:23]")
        a("s_waitcnt lgkmcnt(0)")
        a("s_cmp_lg_u32 s18, 0")
        a("s_cbranch_scc1 L_end")
        a("s_lshl_b32 s3, s2, 8")
        a("s_lshl_b32 s24, s48, 5")
        a("s_add_u32 s3, s3, s24")
        a(f"s_add_u32 s3, s3, {STAMP_OFF}")
        a("v_mov_b32 v25, s3")
        a("s_mov_b64 exec, 1")
        regs = [84, 22, 20] + SREGS
        for i, r in enumerate(regs):
            if i >= 2: a(f"s_sub_u32 s{r}, s{r}, s82")
            a(f"v_mov_b32 v20, s{r}")
            a(f"buffer_store_dword v20, v25, s[40:43], 0 offen offset:{4*i}")
    a.label("L_end")
    a("s_endpgm")
    return wrap_single(a.text(), 256, 512, 163840)

if __name__ == "__main__":
    open("k8.s", "w").write(gen(False))
    open("k8_st.s", "w").write(gen(True))
    open("k8_a.s", "w").write(gen(True, LSET=5))
```

```python
import sys
from asmlib import *

SLOT = 53248
WB = 36864
HT = 125952
HTS = 592
WPS = 192
WP = 122880
MBX = HT + 59*HTS + 576
CNT = HT + 63*HTS + 576
GSTR = 4352
OST = 131072
FLAG_OFF = 0x1000000
STAMP_OFF = 0x4000000
SREGS = [86,88,90,92,94,96,98,100,4,6,8,10,12,14,16]

def slot_of(s): return s % 3
def w2addr(P):
    if P < 6: return P*8192
    if P < 8: return 106496 + (P-6)*8192
    if P < 15: return 49152 + (P-8)*8192
    return 122880

class LQ:
    def __init__(self, a): self.a = a; self.q = []
    def issue(self, instr, tag):
        self.a(instr); self.q.append(tag)
        assert len(self.q) <= 15, "too many outstanding lds ops"
    def wait(self, tags):
        idx = -1
        for i, t in enumerate(self.q):
            if t in tags: idx = i
        if idx < 0: return
        n = len(self.q) - idx - 1
        self.a(f"s_waitcnt lgkmcnt({n})")
        self.q = self.q[idx+1:]
    def waitall(self):
        self.a("s_waitcnt lgkmcnt(0)"); self.q = []

class VQ:
    def __init__(self, a): self.a = a; self.q = []
    def issue(self, instr, tag): self.a(instr); self.q.append(tag); assert len(self.q) <= 63
    def wait(self, tag):
        idx = max(i for i, t in enumerate(self.q) if t == tag)
        self.a(f"s_waitcnt vmcnt({len(self.q)-idx-1})")
        del self.q[:idx+1]
    def waitall(self): self.a("s_waitcnt vmcnt(0)"); self.q = []

def sigmul_ops(dst, bv, av, t):
    o = []
    o.append(f"v_pk_mul_f32 v[{t}:{t+1}], v[{bv}:{bv+1}], s[76:77]")
    o.append(f"v_pk_mul_f32 v[{t+2}:{t+3}], v[{bv+2}:{bv+3}], s[76:77]")
    for e in range(4): o.append(f"v_exp_f32 v{t+e}, v{t+e}")
    o.append(f"v_pk_add_f32 v[{t}:{t+1}], v[{t}:{t+1}], 1.0 op_sel_hi:[1,0]")
    o.append(f"v_pk_add_f32 v[{t+2}:{t+3}], v[{t+2}:{t+3}], 1.0 op_sel_hi:[1,0]")
    for e in range(4): o.append(f"v_rcp_f32 v{t+e}, v{t+e}")
    o.append(f"v_pk_mul_f32 v[{dst}:{dst+1}], v[{t}:{t+1}], v[{av}:{av+1}]")
    o.append(f"v_pk_mul_f32 v[{dst+2}:{dst+3}], v[{t+2}:{t+3}], v[{av+2}:{av+3}]")
    return o

def gen(stamps=False, codepf=True, X3P=6, W2AT=0, G2ST=False, LSET=6, DWAT=1, CPF=1, probe=None, ND1=6, WF='', LATEW=(0,1), PR=(3,3), NF=24, outflag="nt", DEFER=0, NPRE=7, cmap=0, blkx=False, exp=()):
    a = Asm()
    role = ["L"]
    def stamp(i):
        if probe == (role[0], i): a("s_memrealtime s[84:85]")
        if stamps:
            r = SREGS[i]; a(f"s_memtime s[{r}:{r+1}]")
    def spin_lds(addr, off, tmp, val, lab, sleep=1):
        a("s_mov_b32 s75, 0")
        a.label(lab)
        a(f"ds_read_b32 v{tmp}, v{addr} offset:{off}")
        a("s_add_u32 s75, s75, 1")
        a("s_waitcnt lgkmcnt(0)")
        a(f"v_cmp_ne_u32 vcc, {val}, v{tmp}")
        a("s_cmp_gt_u32 s75, 0x800000")
        a(f"s_cbranch_scc1 {lab}_d")
        a("s_nop 2")
        a(f"s_cbranch_vccz {lab}_d")
        a(f"s_sleep {sleep}")
        a(f"s_branch {lab}")
        a.label(lab + "_d")
    def poll(addr, off, wide, snap, tmp, saddr, lab):
        def fload():
            if wide: a(f"buffer_load_dwordx2 v[{tmp}:{tmp+1}], v{addr}, s[40:43], 0 offen offset:{off} sc1")
            else: a(f"buffer_load_dword v{tmp}, v{addr}, s[40:43], 0 offen offset:{off} sc1")
        def fcmp():
            if wide: a(f"v_cmp_eq_u64 vcc, v[{snap}:{snap+1}], v[{tmp}:{tmp+1}]")
            else: a(f"v_cmp_eq_u32 vcc, v{snap}, v{tmp}")
        a("s_mov_b64 exec, 0xff")
        a("s_mov_b32 s3, 0")
        a.label(lab)
        fload()
        a("s_add_u32 s3, s3, 1")
        a("s_waitcnt vmcnt(0)")
        fcmp()
        a("s_nop 4")
        a(f"s_cbranch_vccz {lab}_done")
        a(f"s_cmp_lt_u32 s3, {NF}")
        a(f"s_cbranch_scc1 {lab}")
        a(f"buffer_load_ubyte v{tmp+2}, v{saddr}, s[44:47], 0 offen sc1")
        a("s_waitcnt vmcnt(0)")
        a(f"v_cmp_ne_u32 s[72:73], 2, v{tmp+2}")
        a("s_nop 4")
        a("s_and_b64 s[72:73], s[72:73], vcc")
        a(f"s_cbranch_scc0 {lab}_done")
        a("s_sleep 8")
        a("s_cmp_lt_u32 s3, 0x80000")
        a(f"s_cbranch_scc1 {lab}")
        a.label(lab + "_done")
        a("s_mov_b64 exec, -1")
    a.label("L_start")
    if probe: a("s_memrealtime s[84:85]")
    if stamps:
        a("s_memtime s[82:83]")
        a("s_memrealtime s[84:85]")
    a("""
    s_cmp_ge_u32 s2, 256
    s_cbranch_scc1 L_end
    s_load_dwordx8 s[4:11], s[0:1], 0     ; x, w1, dw, w2
    s_load_dwordx4 s[12:15], s[0:1], 32
    s_load_dwordx2 s[16:17], s[0:1], 48   ; ws
    v_lshrrev_b32 v1, 6, v0
    v_and_b32 v2, 63, v0                  ; lane
    s_and_b32 s54, s2, 7                  ; xcd
    v_readfirstlane_b32 s48, v1
    s_lshr_b32 s51, s2, 3
    s_and_b32 s49, s51, 7                 ; ct
    s_lshr_b32 s51, s51, 3                ; rt&3
    s_lshl_b32 s50, s54, 2
    s_add_u32 s50, s50, s51               ; rt
    s_lshr_b32 s55, s50, 4                ; batch
    s_and_b32 s56, s50, 15
    s_mul_i32 s56, s56, 250               ; row0
    s_sub_u32 s52, s56, 15
    s_mul_i32 s57, s55, 4096000
    s_add_u32 s53, s49, s50
    s_and_b32 s53, s53, 3                 ; rot r
    s_mov_b32 s22, 4096000
    s_mov_b32 s23, 0x20000
    s_mov_b32 s26, 1048576
    s_mov_b32 s27, 0x20000
    s_lshl_b32 s58, s49, 7                ; ct*128
    s_and_b32 s18, s48, 3                 ; w & 3
    v_lshrrev_b32 v4, 4, v2               ; l>>4  (q / g)
    v_and_b32 v6, 15, v2                  ; l&15
    s_cmp_lt_u32 s48, 4
    s_cbranch_scc1 L_compute
    """)
    def build_srds1():
        a("""
        s_add_u32 s20, s4, s57
        s_addc_u32 s21, s5, 0
        s_mov_b32 s24, s6
        s_mov_b32 s25, s7
        """)
    def build_srds2():
        a("""
        s_mov_b32 s28, s10
        s_mov_b32 s29, s11
        s_mov_b32 s30, 524288
        s_mov_b32 s31, 0x20000
        s_mov_b32 s32, s8
        s_mov_b32 s33, s9
        s_mov_b32 s34, 31744
        s_mov_b32 s35, 0x20000
        s_lshl_b32 s59, s56, 10
        s_add_u32 s59, s59, s57
        s_add_u32 s36, s12, s59
        s_addc_u32 s37, s13, 0
        s_mov_b32 s38, 256000
        s_mov_b32 s39, 0x20000
        s_mov_b32 s40, s16
        s_mov_b32 s41, s17
        s_mov_b32 s42, 0x8000000
        s_mov_b32 s43, 0x20000
        s_mov_b32 s44, s14
        s_mov_b32 s45, s15
        s_mov_b32 s46, 256
        s_mov_b32 s47, 0x20000
        s_mov_b32 s76, 0xbfb8aa3b
        s_mov_b32 s77, 0xbfb8aa3b
        s_and_b32 s19, s49, 6           ; 2*cb
        """)
    a("v_lshlrev_b32 v7, 1, v4")
    a("v_xor_b32 v7, v7, v6            ; c8 for j=0,1")
    a("v_lshrrev_b32 v8, 3, v7")
    a("v_and_b32 v9, 7, v7")
    a("v_lshlrev_b32 v9, 4, v9")
    a("v_lshl_add_u32 v9, v8, 10, v9")
    a("s_lshl_b32 s19, s18, 4")
    a("v_add_u32 v8, s19, v4           ; kr j=0")
    a("v_lshl_add_u32 v9, v8, 11, v9")
    a("v_add_u32 v25, s58, v9")
    a("v_add_u32 v26, 8192, v25")
    a("v_xor_b32 v27, 1024, v25")
    a("v_add_u32 v27, 16384, v27")
    a("v_add_u32 v28, 8192, v27")
    a("s_lshl_b32 s78, s18, 12")
    a(f"s_add_u32 s78, s78, {WB}")
    a("v_lshrrev_b32 v3, 3, v2   ; l>>3")
    a("v_and_b32 v5, 7, v2")
    a("v_add_u32 v10, s52, v3")
    a("s_lshl_b32 s3, s18, 2")
    a("v_add_u32 v11, s3, v4")
    a("v_and_b32 v11, 7, v11           ; swz")
    a("v_xor_b32 v11, v11, v5")
    a("v_lshlrev_b32 v11, 4, v11")
    a("v_lshl_add_u32 v10, v10, 10, v11")
    a("s_lshr_b32 s3, s49, 2           ; hb")
    a("s_mul_i32 s3, s3, 18")
    a("s_add_u32 s79, s3, s18           ; p_0")
    vq = VQ(a)
    if blkx: a("s_and_b32 s73, s54, 1")
    def setup(s):
        a(f"s_add_u32 s3, s53, {s}")
        a(f"s_and_b32 s3, s3, 3")
        blk = s >> 2
        if cmap == 0:
            if blk: a("s_add_u32 s3, s3, 4")
            sh = 2
        elif cmap == 1:
            a("s_lshl_b32 s3, s3, 1")
            if blk: a("s_add_u32 s3, s3, 1")
            sh = 0
        elif cmap == 2:
            a("s_and_b32 s75, s3, 2")
            a("s_add_u32 s3, s3, s75")
            if blk: a("s_add_u32 s3, s3, 2")
            sh = 1
        if blkx:
            a(f"s_lshl_b32 s75, s73, {sh}")
            a("s_xor_b32 s3, s3, s75")
        a(f"s_lshl_b32 s{69+s%2}, s3, 17")
        a(f"s_lshl_b32 s{71+s%2}, s3, 7")
    def xaddr(j):
        if j: a(f"s_add_u32 s79, s79, 4")
        if j >= 4:
            a("s_sub_u32 s75, s79, 36")
            a("s_cmp_ge_u32 s79, 36")
            a("s_cselect_b32 s79, s75, s79")
        a(f"s_lshl_b32 s{60+j}, s79, 10")
        a(f"s_lshl_b32 s75, s79, 13")
        a(f"v_add_u32 v{16+j}, s75, v10")
        a(f"v_min_u32 v{16+j}, 0x80000000, v{16+j}")
    def issue(s, lo=0, hi=13, first=False):
        if lo == 0 and hi > 0 and not first: setup(s)
        base = slot_of(s) * SLOT
        for k in range(lo, hi):
            if k < 4:
                a(f"s_add_u32 m0, s78, {base + k*1024}")
                a("s_nop 0")
                if not ("now0" in exp and s == 0): vq.issue(f"buffer_load_dwordx4 v{25+k}, s[24:27], s{69+s%2} offen {WF} lds", ("D", s))
            else:
                j = k - 4
                if first: xaddr(j)
                a(f"s_add_u32 m0, s{60+j}, {base}")
                a("s_nop 0")
                if not (("nox0" in exp and s == 0) or ("halfx0" in exp and s == 0 and j >= 5)): vq.issue(f"buffer_load_dwordx4 v{16+j}, s[20:23], s{71+s%2} offen nt lds", ("D", s))
    def w2p(PGs, vreg=47):
        for PG in PGs:
            P, sub = divmod(PG, 2)
            a(f"s_add_u32 m0, s74, {w2addr(P) + sub*4096}")
            a(f"s_add_u32 s75, s19, {P & 7}")
            a("s_and_b32 s75, s75, 7")
            a("s_lshl_b32 s75, s75, 16")
            a(f"s_add_u32 s75, s75, {sub*16384 + (P >> 3)*32768}")
            vq.issue(f"buffer_load_dwordx4 v{vreg}, s[28:31], s75 offen lds", ("W2",))
    setup(0)
    a("s_waitcnt lgkmcnt(0)")
    build_srds1()
    stamp(0)
    issue(0, 0, 12, first=True)
    xaddr(8)
    build_srds2()
    a("v_lshrrev_b32 v7, 1, v2")
    a("v_and_b32 v8, 1, v2")
    a("v_lshlrev_b32 v9, 10, v7")
    a("v_lshl_add_u32 v9, v8, 2, v9")
    a("s_lshl_b32 s3, s18, 4")
    a("s_add_u32 s3, s3, s58")
    a("v_add_u32 v30, s3, v9")
    a(f"s_mul_i32 s3, s50, {GSTR}")
    a(f"s_add_u32 s3, s3, {FLAG_OFF}")
    a("v_lshlrev_b32 v39, 4, v5")
    a("v_add_u32 v39, s3, v39")
    a("s_and_b32 s3, s49, 1")
    a("s_lshl_b32 s75, s51, 1")
    a("s_add_u32 s3, s3, s75")
    a("s_lshl_b32 s3, s3, 2")
    a("s_add_u32 s3, s3, s18")
    a("s_lshl_b32 s3, s3, 14")
    a("s_lshl_b32 s75, s19, 7")
    a("s_add_u32 s3, s3, s75")
    a("v_lshlrev_b32 v9, 10, v7")
    a("v_lshl_add_u32 v9, v8, 7, v9")
    a("v_add_u32 v32, s3, v9")
    a("s_lshl_b32 s3, s50, 3")
    a("v_add_u32 v33, s3, v5")
    a("v_cmp_eq_u32 s[80:81], s49, v2")
    def late_setup():
        a(f"s_mul_i32 s3, s18, {4*WPS}")
        a(f"s_add_u32 s3, s3, {WP}")
        a(f"v_mul_u32_u24 v31, {2*WPS}, v8")
        a("v_lshl_add_u32 v31, v7, 1, v31")
        a("v_add_u32 v31, s3, v31")
        a("v_lshlrev_b32 v9, 4, v2")
        a("v_add_u32 v29, s3, v9")
        for i in range(4): a(f"v_mov_b32 v{48+i}, 0")
        for sx in range(2):
            a(f"v_lshlrev_b32 v8, 3, v4")
            a(f"v_sub_u32 v8, v8, v6")
            a(f"v_add_u32 v8, {32*sx+8}, v8      ; u+8")
            a("v_and_b32 v9, 1, v8")
            a("v_mul_u32_u24 v9, 94, v9")
            a("v_lshl_add_u32 v9, v8, 1, v9")
            a("v_cmp_gt_u32 vcc, 39, v8")
            a("s_nop 1")
            a("v_cndmask_b32 v9, 0, v9, vcc")
            a(f"v_add_u32 v{42+sx}, s3, v9")
        a("s_lshr_b32 s3, s18, 1")
        a("s_lshl_b32 s3, s3, 2")
        a("v_add_u32 v8, s3, v4")
        a("v_lshlrev_b32 v8, 1, v8")
        a("v_xor_b32 v8, v8, v6            ; c8")
        a("v_lshlrev_b32 v8, 4, v8")
        a("s_lshl_b32 s3, s18, 2")
        a("v_add_u32 v9, s3, v4")
        a("v_lshl_add_u32 v8, v9, 10, v8")
        a("s_lshl_b32 s3, s19, 7            ; cb*256")
        a("v_add_u32 v47, s3, v8")
        a("s_lshl_b32 s74, s18, 10         ; lw*1024")
        a(f"s_mul_i32 s3, s18, {8*HTS}")
        a(f"s_add_u32 s3, s3, {HT}")
        a("v_lshlrev_b32 v12, 5, v6")
        a("v_add_u32 v12, s3, v12")
        a("v_and_b32 v13, 1, v4")
        a("v_lshl_add_u32 v13, v13, 4, v12")
        a("v_add_u32 v13, 64, v13            ; s=1 addr")
        a("v_lshl_add_u32 v12, v4, 4, v12    ; s=0 addr")
        a("s_lshl_b32 s3, s50, 18")
        a("s_lshl_b32 s75, s49, 11")
        a("s_add_u32 s3, s3, s75")
        a("s_lshl_b32 s75, s18, 8")
        a("s_add_u32 s3, s3, s75")
        a("v_lshlrev_b32 v14, 16, v4")
        a("v_lshl_add_u32 v14, v6, 4, v14")
        a("v_add_u32 v14, s3, v14")
        a(f"v_mov_b32 v38, {CNT}")
        a("v_mov_b32 v45, 1")
    TW = 128
    def toep(rho):
        a(f"ds_write_b16 v31, v{34+rho} offset:16")
        a(f"ds_write_b16 v31, v{34+rho} offset:110")
        a(f"ds_write_b16_d16_hi v31, v{34+rho} offset:{WPS+16}")
        a(f"ds_write_b16_d16_hi v31, v{34+rho} offset:{WPS+110}")
        for c in range(4):
            lc = 4*rho + c; o = c * (WPS // 4)
            for sx in range(2):
                w = TW + 8*lc + 4*sx
                a(f"ds_read2_b32 v[{w}:{w+1}], v{42+sx} offset0:{o} offset1:{o+1}")
                a(f"ds_read2_b32 v[{w+2}:{w+3}], v{42+sx} offset0:{o+2} offset1:{o+3}")
            a("s_waitcnt lgkmcnt(10)")
    if DWAT == 0:
        for i, o in enumerate((0, 8, 64, 72)):
            vq.issue(f"buffer_load_dword v{34+i}, v30, s[32:35], 0 offen offset:{o}", ("dw",))
        a("s_mov_b64 exec, 0xff")
        vq.issue("buffer_load_dwordx4 v[120:123], v39, s[40:43], 0 offen sc1", ("snap",))
        a("s_mov_b64 exec, -1")
    issue(0, 12, 13)
    issue(1, 0, ND1)
    vq.wait(("D", 0)); stamp(1); a("s_barrier")
    issue(1, ND1, 13); issue(2, 0, 6)
    vq.wait(("D", 1)); a("s_barrier")
    issue(2, 6, 13); issue(3)
    def dwsnap():
        for i, o in enumerate((0, 8, 64, 72)):
            vq.issue(f"buffer_load_dword v{34+i}, v30, s[32:35], 0 offen offset:{o}", ("dw",))
        a("s_mov_b64 exec, 0xff")
        vq.issue("buffer_load_dwordx4 v[120:123], v39, s[40:43], 0 offen sc1", ("snap",))
        a("s_mov_b64 exec, -1")
    if DWAT == 1: dwsnap()
    for s in range(2, 8):
        vq.wait(("D", s))
        if s in (4, 5, 7): stamp({4: 2, 5: 3, 7: 4}[s])
        a("s_barrier")
        if s + 2 <= 7: issue(s + 2)
        if s == LSET: late_setup()
        if s == 5:
            a("s_mov_b64 exec, 0xffffffff")
            vq.issue("buffer_load_dword v44, v32, s[28:31], 0 offen", ("pf",))
            a("s_mov_b64 exec, -1")
            a("s_getreg_b32 s3, hwreg(HW_REG_XCC_ID)")
            a("s_and_b32 s3, s3, 15")
            a("s_lshl_b32 s3, s3, 8")
            a("s_add_u32 s3, s3, 1")
            a("v_add_u32 v124, s3, v122")
            a("s_mov_b64 exec, s[80:81]")
            vq.issue("buffer_store_dword v124, v39, s[40:43], 0 offen offset:8", ("hello",))
            a("s_mov_b64 exec, -1")
        if s == 6:
            a("s_mov_b32 exec_hi, 0xffff")
            a("ds_write_b128 v29, v[48:51]")
            a("s_mov_b64 exec, -1")
            toep(0)
    w2p(list(range(12, 16)) + list(range(0, 12)))
    toep(1)
    a("v_add_u32 v16, 1, v120")
    a("v_add_u32 v17, 1, v121")
    a("v_mov_b32 v18, 2")
    a(f"v_lshrrev_b32 v7, 1, v5")
    a(f"v_mul_u32_u24 v7, {HTS}, v7")
    a("v_and_b32 v8, 1, v5")
    a("v_lshl_add_u32 v7, v8, 3, v7")
    a("s_mov_b64 exec, 0xff")
    a(f"v_add_u32 v7, {MBX}, v7")
    a("ds_write_b64 v7, v[120:121]")
    a("s_mov_b64 exec, -1")
    a("s_waitcnt lgkmcnt(0)")
    a("s_setprio 2")
    CD = 48; CA = 80; CT = 112
    def flag(h):
        if h == 1:
            a("s_mov_b64 exec, 0xff")
            vq.issue("buffer_load_dword v125, v39, s[40:43], 0 offen offset:8 sc1", ("S", 1))
        a("s_mov_b64 exec, 1")
        vq.wait(("S", h))
        a(f"ds_add_rtn_u32 v46, v38, v45 offset:{4*h}")
        a("s_waitcnt lgkmcnt(0)")
        a("v_cmp_eq_u32 vcc, 3, v46")
        a("s_nop 4")
        a(f"s_cbranch_vccz L_noflag{h}")
        a("s_mov_b64 exec, s[80:81]")
        a(f"buffer_store_dword v{16+h}, v39, s[40:43], 0 offen offset:{4*h}")
        if h == 1:
            a("s_mov_b64 exec, 0xff")
            a("v_cmp_ne_u32 vcc, v124, v125")
            a("s_nop 4")
            a(f"s_cbranch_vccz L_noflag{h}")
            a("s_mov_b64 exec, s[80:81]")
            a("buffer_store_byte v18, v33, s[44:47], 0 offen sc1")
        a.label(f"L_noflag{h}")
        a("s_mov_b64 exec, -1")
        stamp(7 + 3*h)
    def conv_half(h):
        lq = LQ(a)
        CP = 64 if h == 0 else 48
        def cread(c):
            d = CD + (c % 4)*8
            off = (32*h + c) * HTS
            lq.issue(f"ds_read_b128 v[{d}:{d+3}], v12 offset:{off}", ("c", c))
            lq.issue(f"ds_read_b128 v[{d+4}:{d+7}], v13 offset:{off}", ("c", c))
        def mf(c):
            d = CD + (c % 4)*8; w = TW + 8*(8*h + c); ac = CA + 4*c
            lq.wait([("c", c)])
            a(f"v_mfma_f32_16x16x32_bf16 v[{ac}:{ac+3}], v[{d}:{d+3}], v[{w}:{w+3}], 0")
            a(f"v_mfma_f32_16x16x32_bf16 v[{ac}:{ac+3}], v[{d+4}:{d+7}], v[{w+4}:{w+7}], v[{ac}:{ac+3}]")
            if c + 4 < 8: cread(c + 4)
        for c in range(4): cread(c)
        for c in range(8): mf(c)
        for c in range(8):
            ac = CA + 4*c
            for o in sigmul_ops(ac, ac, ac, CT + (c % 2)*4): a(o)
        for r in range(4):
            for e in range(4):
                a(f"v_cvt_pk_bf16_f32 v{CP+4*r+e}, v{CA+8*e+r}, v{CA+8*e+4+r}")
            a(f"s_mov_b32 s3, {r*16384}")
            vq.issue(f"buffer_store_dwordx4 v[{CP+4*r}:{CP+4*r+3}], v14, s[40:43], s3 offen offset:{1024*h} sc1", ("S", h))
        stamp(6 + 3*h)
    a("s_barrier")
    stamp(5)
    conv_half(0)
    toep(2)
    flag(0)
    toep(3)
    a("s_waitcnt lgkmcnt(0)")
    a("s_barrier")
    stamp(8)
    conv_half(1)
    flag(1)
    a("s_cmp_lg_u32 s18, 0")
    a("s_cbranch_scc1 L_lnopoll")
    poll(39, 4, False, 121, 64, 33, "L_pollB")
    a.label("L_lnopoll")
    stamp(11)
    a("s_barrier")
    a("s_branch L_fin")

    a.label("L_compute")
    role[0] = "C"
    a("s_waitcnt lgkmcnt(0)")
    build_srds1(); build_srds2()
    for i in range(4): a(f"v_mov_b32 v{252+i}, 0")
    a(f"v_mov_b32 v15, {CNT}")
    a("ds_write_b128 v15, v[252:255]")
    if CPF == 2:
        a("s_getpc_b64 s[78:79]")
        a.label("L_pc2")
        a("s_sub_u32 s78, s78, L_pc2-L_start")
        a("s_subb_u32 s79, s79, 0")
        a("v_lshlrev_b32 v251, 7, v0")
        a("v_min_u32 v251, L_end-L_start, v251")
        a("global_load_dword v252, v251, s[78:79]")
    if codepf and CPF == 1:
        a("s_cmp_lg_u32 s48, 1")
        a("s_cbranch_scc1 L_nopf")
        a("s_getpc_b64 s[78:79]")
        a.label("L_pc")
        a("s_sub_u32 s78, s78, L_pc-L_start")
        a("s_subb_u32 s79, s79, 0")
        a("s_lshr_b32 s3, s2, 3")
        a("s_lshl_b32 s3, s3, 10")
        a("v_lshlrev_b32 v251, 7, v2")
        a("v_add_u32 v251, s3, v251")
        a("v_min_u32 v251, L_end-L_start, v251")
        a("s_mov_b64 exec, 0xff")
        a("global_load_dword v252, v251, s[78:79]")
        a("s_mov_b64 exec, -1")
        a.label("L_nopf")
    a("s_lshr_b32 s60, s48, 1          ; wr")
    a("s_and_b32 s61, s48, 1           ; wc")
    a("s_mul_i32 s3, s60, 144")
    a("v_add_u32 v7, s3, v6")
    a("v_lshrrev_b32 v8, 1, v6")
    a("v_xor_b32 v8, v8, v4")
    a("v_lshlrev_b32 v8, 4, v8")
    a("v_lshl_add_u32 v8, v7, 7, v8")
    a("v_xor_b32 v9, 64, v8")
    a("v_lshrrev_b32 v7, 2, v6            ; i>>2")
    a("v_and_b32 v10, 1, v4")
    a("v_lshl_add_u32 v10, v10, 2, v7     ; w")
    a("v_lshlrev_b32 v10, 5, v10")
    a("v_and_b32 v11, 3, v6")
    a("v_lshl_add_u32 v10, v11, 3, v10    ; + (i&3)*8")
    a("v_lshl_add_u32 v7, v4, 3, v7       ; 8g + (i>>2)")
    a("v_lshl_add_u32 v224, v7, 8, v10")
    for t in range(1, 8): a(f"v_xor_b32 v{224+t}, {32*t}, v224")
    a("s_lshl_b32 s3, s61, 5")
    a("v_xor_b32 v10, s3, v224             ; t = wc")
    a(f"v_add_u32 v10, {WB}, v10")
    a("v_xor_b32 v11, 64, v10             ; a1: t^2")
    a("v_xor_b32 v12, 128, v10            ; b0: t^4")
    a("v_xor_b32 v13, 192, v10            ; b1: t^6")
    a(f"v_mov_b32 v15, {CNT}")
    a("v_mov_b32 v5, 1")
    a("s_lshr_b32 s3, s18, 1")
    a("s_lshl_b32 s3, s3, 2")
    a("v_add_u32 v3, s3, v4")
    a("v_lshlrev_b32 v3, 1, v3")
    a("v_xor_b32 v3, v3, v6            ; c8")
    a("v_lshlrev_b32 v3, 4, v3")
    a("s_lshl_b32 s3, s18, 2")
    a("v_add_u32 v7, s3, v4")
    a("v_lshl_add_u32 v3, v7, 10, v3")
    a("s_lshl_b32 s3, s19, 7            ; cb*256")
    a("v_add_u32 v3, s3, v3")
    a("s_lshl_b32 s74, s18, 10")
    a("s_lshl_b32 s3, s61, 4")
    a("v_add_u32 v7, s3, v6")
    a(f"v_mul_u32_u24 v7, {HTS}, v7")
    a("v_lshl_add_u32 v7, v4, 3, v7")
    a("s_mul_i32 s3, s60, 288")
    a(f"s_add_u32 s3, s3, {HT}")
    a("v_add_u32 v14, s3, v7")
    a("s_and_b32 s60, s49, 1             ; hf")
    a("s_lshr_b32 s61, s49, 1            ; cb")
    a("s_lshl_b32 s3, s60, 2")
    a("s_add_u32 s3, s3, s48")
    a("s_lshl_b32 s59, s3, 15")
    a("s_lshl_b32 s75, s50, 18")
    a("s_add_u32 s3, s59, s75")
    a("v_lshlrev_b32 v232, 4, v2")
    a("v_add_u32 v232, s3, v232")
    a("v_add_u32 v233, 16384, v232")
    for j in range(8):
        a(f"s_add_u32 s3, s19, {j}")
        a("s_and_b32 s3, s3, 7")
        a(f"s_lshl_b32 s{62+j}, s3, 11")
    a(f"s_mul_i32 s3, s50, {GSTR}")
    a(f"s_add_u32 s3, s3, {FLAG_OFF}")
    a("v_and_b32 v7, 7, v2")
    a("v_lshlrev_b32 v234, 4, v7")
    a("v_add_u32 v234, s3, v234")
    a("s_lshl_b32 s3, s50, 3")
    a("v_add_u32 v248, s3, v7")
    a("v_lshrrev_b32 v249, 1, v7")
    a(f"v_mul_u32_u24 v249, {HTS}, v249")
    a("v_and_b32 v7, 1, v7")
    a("v_lshl_add_u32 v249, v7, 3, v249")
    a(f"v_add_u32 v249, {MBX}, v249")
    a("s_lshl_b32 s3, s48, 13")
    a(f"s_add_u32 s3, s3, {OST}")
    a("v_lshrrev_b32 v235, 1, v4")
    a("v_xor_b32 v235, v235, v6")
    a("v_lshlrev_b32 v235, 4, v235")
    a("v_and_b32 v7, 1, v4")
    a("v_lshl_add_u32 v235, v7, 3, v235")
    a("v_lshl_add_u32 v235, v6, 8, v235")
    a("v_add_u32 v235, s3, v235")
    for T_ in range(1, 8): a(f"v_xor_b32 v{235+T_}, {32*T_}, v235")
    a("v_xor_b32 v243, v6, v4")
    a("v_lshlrev_b32 v243, 4, v243")
    a("v_lshl_add_u32 v243, v4, 8, v243")
    a("v_add_u32 v243, s3, v243")
    for n in range(1, 4): a(f"v_xor_b32 v{243+n}, {64*n}, v243")
    a("s_lshl_b32 s75, s61, 8")
    a("s_add_u32 s3, s59, s75")
    a("v_lshlrev_b32 v247, 4, v6")
    a("v_lshl_add_u32 v247, v4, 10, v247")
    a("v_add_u32 v247, s3, v247")
    ACC = 16; AR = 160; NA = 8; BR = 192
    def acc(rt, c): b = ACC + (rt*4 + c)*4; return f"v[{b}:{b+3}]"
    def areg(n): b = AR + (n % NA)*4; return f"v[{b}:{b+3}]"
    def breg(kk, c, h=None):
        b = BR + (kk % 2)*16 + c*4
        if h is None: return f"v[{b}:{b+3}]"
        return f"v[{b+2*h}:{b+2*h+1}]"
    lq = LQ(a)
    NSTEP = 144
    def readA(n):
        s, r = divmod(n % NSTEP if n < NSTEP else n - 18, 18); ks, rt = divmod(r, 9)
        lq.issue(f"ds_read_b128 {areg(n)}, v{8+ks} offset:{rt*2048}", ("A", n))
    def readB(kk, c):
        ks = kk % 2
        for h in range(2):
            lq.issue(f"ds_read_b64_tr_b16 {breg(kk,c,h)}, v{10+c} offset:{ks*8192 + h*1024}", ("B", kk, c))
    def switch_slot(s):
        d = (slot_of(s) - slot_of(s-1)) * SLOT
        for r in range(8, 14):
            if d > 0: a(f"v_add_u32 v{r}, {d}, v{r}")
            else: a(f"v_subrev_u32 v{r}, {-d}, v{r}")
    PD = 6; BARP = 4
    stamp(0)
    a("s_waitcnt lgkmcnt(0)")
    a("s_barrier")
    stamp(1)
    for c in range(4): readB(0, c)
    for n in range(4): readA(n)
    nextA = 4
    for n in range(NSTEP):
        s, r = divmod(n, 18); ks, rt = divmod(r, 9)
        kk = s*2 + ks
        if r == 18 - BARP and s < 7:
            lq.waitall()
            a("s_barrier")
            switch_slot(s + 1)
            if probe == ("C", 100 + s + 1): a("s_memrealtime s[84:85]")
            if s + 1 in (4, 5, 7) and not G2ST: stamp({4: 2, 5: 3, 7: 4}[s+1])
        lim_stage = s + 1 if r >= 18 - BARP else s
        def canA(m): return m < NSTEP and m // 18 <= lim_stage and m < n + NA
        pend = []
        if ks == 0 and 2 <= rt <= 5: pend.append(("B", kk+1, rt-2))
        if ks == 1 and s < 7 and r >= 18 - BARP and r < 18 - BARP + 2:
            o = (r - (18 - BARP)) * 2
            pend.append(("B", kk+1, o)); pend.append(("B", kk+1, o+1))
        cnt = 0
        while canA(nextA) and nextA <= n + PD + (1 if (r >= 9 or s == 7) else 0) and cnt < 2:
            pend.append(("A", nextA)); nextA += 1; cnt += 1
        need = [("A", n)] + ([("B", kk, c) for c in range(4)] if rt == 0 else [])
        lq.wait(need)
        cs = (0, 2) if (DEFER and s == 7) else (0, 1, 2, 3)
        for ci, c in enumerate(cs):
            cin = "0" if kk == 0 else acc(rt, c)
            a(f"v_mfma_f32_16x16x32_bf16 {acc(rt,c)}, {areg(n)}, {breg(kk,c)}, {cin}")
            rem = len(cs) - ci
            k = (len(pend) + rem - 1) // rem if pend else 0
            for _ in range(k):
                p = pend.pop(0)
                if p[0] == "A": readA(p[1])
                else: readB(p[1], p[2])
        if r == 18 - BARP - 1:
            assert nextA >= min(NSTEP, (s+1)*18), (n, nextA)
    stamp(5)
    def glu(j):
        def wr(rt):
            av = ACC + (rt*4 + j)*4
            lq.issue(f"ds_write_b64 v14, v[{av}:{av+1}] offset:{j*32*HTS + rt*32}", ("w", j, rt))
        for rt in range(9):
            av = ACC + (rt*4 + j)*4; bv = ACC + (rt*4 + 2 + j)*4
            if j == 1 and rt == W2AT: w2p(range(16, 30), 3)
            for o in sigmul_ops(bv, bv, av, bv): a(o)
            a(f"v_cvt_pk_bf16_f32 v{av}, v{bv}, v{bv+1}")
            a(f"v_cvt_pk_bf16_f32 v{av+1}, v{bv+2}, v{bv+3}")
            if not LATEW[j]: wr(rt)
        if LATEW[j]:
            for rt in range(9): wr(rt)
        lq.waitall()
    a("s_nop 3")
    glu(0)
    stamp(6)
    a("s_barrier")
    if DEFER:
        nextA = NSTEP + 6
        for n in range(NSTEP, NSTEP + 18):
            ks, rt = divmod(n - NSTEP, 9); kk = 14 + ks
            lq.wait([("A", n)])
            for c in (1, 3):
                a(f"v_mfma_f32_16x16x32_bf16 {acc(rt,c)}, {areg(n)}, {breg(kk,c)}, {acc(rt,c)}")
                if nextA < NSTEP + 18 and nextA < n + NA: readA(nextA); nextA += 1
            if n == NSTEP + 14:
                lq.waitall()
                a("s_mov_b64 exec, 1")
                lq.issue("ds_add_u32 v15, v5 offset:12", ("e0",))
                a("s_mov_b64 exec, -1")
        a("s_nop 3")
    assert not DEFER
    vq = VQ(a)
    stamp(7)
    lq.issue("ds_read_b64 v[250:251], v249", ("mb",))
    glu(1)
    stamp(8)
    a("s_barrier")
    stamp(9)
    w2p([30, 31], 3)
    a(f"s_setprio {PR[1]}")
    a("s_cmp_lg_u32 s48, 0")
    a("s_cbranch_scc1 L_waitgo")
    a(f"s_setprio {PR[0]}")
    poll(234, 0, True, 250, 28, 248, "L_pollA")
    a("ds_write_b32 v15, v5 offset:8")
    a("s_branch L_go")
    a.label("L_waitgo")
    spin_lds(15, 8, 7, 1, "L_wg", sleep=1)
    a.label("L_go")
    a("s_waitcnt lgkmcnt(0)")
    stamp(10)
    A2 = 96; NA2 = 8; B2 = 160; NB2 = 8; AC2 = 32
    vq = VQ(a)
    def loadA(P):
        h, j = divmod(P, 8)
        for r2 in range(2):
            b = A2 + (P % NA2)*8 + 4*r2
            vq.issue(f"buffer_load_dwordx4 v[{b}:{b+3}], v{232+r2}, s[40:43], s{62+j} offen offset:{h*1024} sc1", P)
    lq = LQ(a)
    def readB2(f):
        P, T_ = divmod(f, 8)
        ad = w2addr(P)
        if P == 1: a(f"v_add_u32 v{16+T_}, 65536, v{224+T_}")
        reg = 224 + T_ if ad < 65536 else 16 + T_
        ad %= 65536
        b = B2 + (f % NB2)*4
        for h in range(2):
            lq.issue(f"ds_read_b64_tr_b16 v[{b+2*h}:{b+2*h+1}], v{reg} offset:{ad + h*1024}", ("B", f))
    for P in range(6): loadA(P)
    nextL = 6
    BD = 6
    for f in range(BD): readB2(f)
    a("s_setprio 0")
    for P in range(16):
        if P == X3P:
            a("s_barrier")
            stamp(12)
        vq.wait(P)
        if P == 0: stamp(11)
        if G2ST and P in (2, 4, 5, 8, 9, 10, 12, 14): stamp({2:0, 4:1, 5:2, 8:3, 9:4, 10:5, 12:6, 14:7}[P])
        for T_ in range(8):
            f = P*8 + T_
            lq.wait([("B", f)])
            b = B2 + (f % NB2)*4
            for r2 in range(2):
                ab = A2 + (P % NA2)*8 + 4*r2
                ac = AC2 + (r2*8 + T_)*4
                cin = "0" if P == 0 else f"v[{ac}:{ac+3}]"
                a(f"v_mfma_f32_16x16x32_bf16 v[{ac}:{ac+3}], v[{b}:{b+3}], v[{ab}:{ab+3}], {cin}")
                if r2 == 0 and f + BD < 128: readB2(f + BD)
            if T_ % 2 == 0 and nextL < 16 and nextL < P + NA2 and (nextL < 8 or P >= X3P):
                loadA(nextL); nextL += 1
    stamp(13)
    a("s_nop 3")
    PK = 96; RB = 128
    lq = LQ(a)
    def ostore(n):
        if n: a(f"v_add_u32 v247, 4096, v247")
        lq.wait([("r", n)])
        a(f"buffer_store_dwordx4 v[{RB+4*n}:{RB+4*n+3}], v247, s[36:39], 0 offen {outflag}")
    for r2 in range(2):
        for T_ in range(8):
            ac = AC2 + (r2*8 + T_)*4; p = PK + (r2*8 + T_)*2
            a(f"v_cvt_pk_bf16_f32 v{p}, v{ac}, v{ac+1}")
            a(f"v_cvt_pk_bf16_f32 v{p+1}, v{ac+2}, v{ac+3}")
            if r2 == 1 and T_ >= 3 and T_ < 7: ostore(T_ - 3)
            lq.issue(f"ds_write_b64 v{235+T_}, v[{p}:{p+1}] offset:{r2*4096}", ("w", r2, T_))
        for n in range(4*r2, 4*r2+4):
            lq.issue(f"ds_read_b128 v[{RB+4*n}:{RB+4*n+3}], v{243+n%4} offset:{n*1024}", ("r", n))
    for n in range(4, 8): ostore(n)
    if probe:
        a("s_waitcnt vmcnt(0) lgkmcnt(0)")
        a.label("L_spin")
        a("s_memrealtime s[86:87]")
        a("s_waitcnt lgkmcnt(0)")
        a("s_sub_u32 s3, s86, s84")
        a("s_cmp_lt_u32 s3, 3000")
        a("s_cbranch_scc1 L_spin")
    a.label("L_fin")
    if stamps:
        a("s_waitcnt vmcnt(0)")
        a("s_memtime s[20:21]")
        a("s_memrealtime s[22:23]")
        a("s_waitcnt lgkmcnt(0)")
        a("s_cmp_lg_u32 s18, 0")
        a("s_cbranch_scc1 L_end")
        a("s_lshl_b32 s3, s2, 8")
        a("s_lshl_b32 s24, s48, 5")
        a("s_add_u32 s3, s3, s24")
        a(f"s_add_u32 s3, s3, {STAMP_OFF}")
        a("v_mov_b32 v25, s3")
        a("s_mov_b64 exec, 1")
        regs = [84, 22, 20] + SREGS
        for i, r in enumerate(regs):
            if i >= 2: a(f"s_sub_u32 s{r}, s{r}, s82")
            a(f"v_mov_b32 v20, s{r}")
            a(f"buffer_store_dword v20, v25, s[40:43], 0 offen offset:{4*i}")
    a.label("L_end")
    a("s_endpgm")
    return wrap_single(a.text(), 256, 512, 163840)

if __name__ == "__main__":
    open("k8.s", "w").write(gen(False))
    open("k8_st.s", "w").write(gen(True))
    P = ("C", 104)
    open("k8_q0.s", "w").write(gen(False, probe=P))
    open("k8_q1.s", "w").write(gen(False, probe=P, codepf=False))
    open("k8_q2.s", "w").write(gen(False, probe=P, CPF=2))
    open("k8_q3.s", "w").write(gen(False, probe=P, DWAT=0))
    open("k8_q4.s", "w").write(gen(False, probe=("C", 1), codepf=False))
    open("k8_q5.s", "w").write(gen(False, probe=("C", 99)))
```

```python
import sys
from asmlib import *

SLOT = 53248
WB = 36864
HT = 125952
HTS = 592
WPS = 192
WP = 122880
MBX = HT + 59*HTS + 576
CNT = HT + 63*HTS + 576
GSTR = 4352
OST = 131072
FLAG_OFF = 0x1000000
STAMP_OFF = 0x4000000
SREGS = [86,88,90,92,94,96,98,100,4,6,8,10,12,14,16]

def slot_of(s): return s % 3
def w2addr(P):
    if P < 6: return P*8192
    if P < 8: return 106496 + (P-6)*8192
    if P < 15: return 49152 + (P-8)*8192
    return 122880

class LQ:
    def __init__(self, a): self.a = a; self.q = []
    def issue(self, instr, tag):
        self.a(instr); self.q.append(tag)
        assert len(self.q) <= 15, "too many outstanding lds ops"
    def wait(self, tags):
        idx = -1
        for i, t in enumerate(self.q):
            if t in tags: idx = i
        if idx < 0: return
        n = len(self.q) - idx - 1
        self.a(f"s_waitcnt lgkmcnt({n})")
        self.q = self.q[idx+1:]
    def waitall(self):
        self.a("s_waitcnt lgkmcnt(0)"); self.q = []

class VQ:
    def __init__(self, a): self.a = a; self.q = []
    def issue(self, instr, tag): self.a(instr); self.q.append(tag); assert len(self.q) <= 63
    def wait(self, tag):
        idx = max(i for i, t in enumerate(self.q) if t == tag)
        self.a(f"s_waitcnt vmcnt({len(self.q)-idx-1})")
        del self.q[:idx+1]
    def waitall(self): self.a("s_waitcnt vmcnt(0)"); self.q = []

def sigmul_ops(dst, bv, av, t):
    o = []
    o.append(f"v_pk_mul_f32 v[{t}:{t+1}], v[{bv}:{bv+1}], s[76:77]")
    o.append(f"v_pk_mul_f32 v[{t+2}:{t+3}], v[{bv+2}:{bv+3}], s[76:77]")
    for e in range(4): o.append(f"v_exp_f32 v{t+e}, v{t+e}")
    o.append(f"v_pk_add_f32 v[{t}:{t+1}], v[{t}:{t+1}], 1.0 op_sel_hi:[1,0]")
    o.append(f"v_pk_add_f32 v[{t+2}:{t+3}], v[{t+2}:{t+3}], 1.0 op_sel_hi:[1,0]")
    for e in range(4): o.append(f"v_rcp_f32 v{t+e}, v{t+e}")
    o.append(f"v_pk_mul_f32 v[{dst}:{dst+1}], v[{t}:{t+1}], v[{av}:{av+1}]")
    o.append(f"v_pk_mul_f32 v[{dst+2}:{dst+3}], v[{t+2}:{t+3}], v[{av+2}:{av+3}]")
    return o

def gen(stamps=False, codepf=True, X3P=6, W2AT=0, G2ST=False, LSET=6, DWAT=1, CPF=1, probe=None, enc=None, ND1=6, WF='', LATEW=(0,1), PR=(3,3), NF=24, outflag="nt", DEFER=0, NPRE=7, cmap=0, blkx=False, exp=()):
    a = Asm()
    role = ["L"]
    def encst(i):
        if enc and role[0] == "C":
            ins = "s_memtime" if enc[0] == "cyc" else "s_memrealtime"
            if i == enc[1]: a(f"{ins} s[88:89]")
            if i == enc[2]: a(f"{ins} s[90:91]")
    def stamp(i):
        if probe == (role[0], i): a("s_memrealtime s[84:85]")
        encst(i)
        if stamps:
            r = SREGS[i]; a(f"s_memtime s[{r}:{r+1}]")
    def spin_lds(addr, off, tmp, val, lab, sleep=1):
        a("s_mov_b32 s75, 0")
        a.label(lab)
        a(f"ds_read_b32 v{tmp}, v{addr} offset:{off}")
        a("s_add_u32 s75, s75, 1")
        a("s_waitcnt lgkmcnt(0)")
        a(f"v_cmp_ne_u32 vcc, {val}, v{tmp}")
        a("s_cmp_gt_u32 s75, 0x800000")
        a(f"s_cbranch_scc1 {lab}_d")
        a("s_nop 2")
        a(f"s_cbranch_vccz {lab}_d")
        a(f"s_sleep {sleep}")
        a(f"s_branch {lab}")
        a.label(lab + "_d")
    def poll(addr, off, wide, snap, tmp, saddr, lab):
        def fload():
            if wide: a(f"buffer_load_dwordx2 v[{tmp}:{tmp+1}], v{addr}, s[40:43], 0 offen offset:{off} sc1")
            else: a(f"buffer_load_dword v{tmp}, v{addr}, s[40:43], 0 offen offset:{off} sc1")
        def fcmp():
            if wide: a(f"v_cmp_eq_u64 vcc, v[{snap}:{snap+1}], v[{tmp}:{tmp+1}]")
            else: a(f"v_cmp_eq_u32 vcc, v{snap}, v{tmp}")
        a("s_mov_b64 exec, 0xff")
        a("s_mov_b32 s3, 0")
        a.label(lab)
        fload()
        a("s_add_u32 s3, s3, 1")
        a("s_waitcnt vmcnt(0)")
        fcmp()
        a("s_nop 4")
        a(f"s_cbranch_vccz {lab}_done")
        a(f"s_cmp_lt_u32 s3, {NF}")
        a(f"s_cbranch_scc1 {lab}")
        a(f"buffer_load_ubyte v{tmp+2}, v{saddr}, s[44:47], 0 offen sc1")
        a("s_waitcnt vmcnt(0)")
        a(f"v_cmp_ne_u32 s[72:73], 2, v{tmp+2}")
        a("s_nop 4")
        a("s_and_b64 s[72:73], s[72:73], vcc")
        a(f"s_cbranch_scc0 {lab}_done")
        a("s_sleep 8")
        a("s_cmp_lt_u32 s3, 0x80000")
        a(f"s_cbranch_scc1 {lab}")
        a.label(lab + "_done")
        a("s_mov_b64 exec, -1")
    a.label("L_start")
    if probe: a("s_memrealtime s[84:85]")
    if stamps:
        a("s_memtime s[82:83]")
        a("s_memrealtime s[84:85]")
    a("""
    s_cmp_ge_u32 s2, 256
    s_cbranch_scc1 L_end
    s_load_dwordx8 s[4:11], s[0:1], 0     ; x, w1, dw, w2
    s_load_dwordx4 s[12:15], s[0:1], 32
    s_load_dwordx2 s[16:17], s[0:1], 48   ; ws
    v_lshrrev_b32 v1, 6, v0
    v_and_b32 v2, 63, v0                  ; lane
    s_and_b32 s54, s2, 7                  ; xcd
    v_readfirstlane_b32 s48, v1
    s_lshr_b32 s51, s2, 3
    s_and_b32 s49, s51, 7                 ; ct
    s_lshr_b32 s51, s51, 3                ; rt&3
    s_lshl_b32 s50, s54, 2
    s_add_u32 s50, s50, s51               ; rt
    s_lshr_b32 s55, s50, 4                ; batch
    s_and_b32 s56, s50, 15
    s_mul_i32 s56, s56, 250               ; row0
    s_sub_u32 s52, s56, 15
    s_mul_i32 s57, s55, 4096000
    s_add_u32 s53, s49, s50
    s_and_b32 s53, s53, 3                 ; rot r
    s_mov_b32 s22, 4096000
    s_mov_b32 s23, 0x20000
    s_mov_b32 s26, 1048576
    s_mov_b32 s27, 0x20000
    s_lshl_b32 s58, s49, 7                ; ct*128
    s_and_b32 s18, s48, 3                 ; w & 3
    v_lshrrev_b32 v4, 4, v2               ; l>>4  (q / g)
    v_and_b32 v6, 15, v2                  ; l&15
    s_cmp_lt_u32 s48, 4
    s_cbranch_scc1 L_compute
    """)
    def build_srds1():
        a("""
        s_add_u32 s20, s4, s57
        s_addc_u32 s21, s5, 0
        s_mov_b32 s24, s6
        s_mov_b32 s25, s7
        """)
    def build_srds2():
        a("""
        s_mov_b32 s28, s10
        s_mov_b32 s29, s11
        s_mov_b32 s30, 524288
        s_mov_b32 s31, 0x20000
        s_mov_b32 s32, s8
        s_mov_b32 s33, s9
        s_mov_b32 s34, 31744
        s_mov_b32 s35, 0x20000
        s_lshl_b32 s59, s56, 10
        s_add_u32 s59, s59, s57
        s_add_u32 s36, s12, s59
        s_addc_u32 s37, s13, 0
        s_mov_b32 s38, 256000
        s_mov_b32 s39, 0x20000
        s_mov_b32 s40, s16
        s_mov_b32 s41, s17
        s_mov_b32 s42, 0x8000000
        s_mov_b32 s43, 0x20000
        s_mov_b32 s44, s14
        s_mov_b32 s45, s15
        s_mov_b32 s46, 256
        s_mov_b32 s47, 0x20000
        s_mov_b32 s76, 0xbfb8aa3b
        s_mov_b32 s77, 0xbfb8aa3b
        s_and_b32 s19, s49, 6           ; 2*cb
        """)
    a("v_lshlrev_b32 v7, 1, v4")
    a("v_xor_b32 v7, v7, v6            ; c8 for j=0,1")
    a("v_lshrrev_b32 v8, 3, v7")
    a("v_and_b32 v9, 7, v7")
    a("v_lshlrev_b32 v9, 4, v9")
    a("v_lshl_add_u32 v9, v8, 10, v9")
    a("s_lshl_b32 s19, s18, 4")
    a("v_add_u32 v8, s19, v4           ; kr j=0")
    a("v_lshl_add_u32 v9, v8, 11, v9")
    a("v_add_u32 v25, s58, v9")
    a("v_add_u32 v26, 8192, v25")
    a("v_xor_b32 v27, 1024, v25")
    a("v_add_u32 v27, 16384, v27")
    a("v_add_u32 v28, 8192, v27")
    a("s_lshl_b32 s78, s18, 12")
    a(f"s_add_u32 s78, s78, {WB}")
    a("v_lshrrev_b32 v3, 3, v2   ; l>>3")
    a("v_and_b32 v5, 7, v2")
    a("v_add_u32 v10, s52, v3")
    a("s_lshl_b32 s3, s18, 2")
    a("v_add_u32 v11, s3, v4")
    a("v_and_b32 v11, 7, v11           ; swz")
    a("v_xor_b32 v11, v11, v5")
    a("v_lshlrev_b32 v11, 4, v11")
    a("v_lshl_add_u32 v10, v10, 10, v11")
    a("s_lshr_b32 s3, s49, 2           ; hb")
    a("s_mul_i32 s3, s3, 18")
    a("s_add_u32 s79, s3, s18           ; p_0")
    vq = VQ(a)
    if blkx: a("s_and_b32 s73, s54, 1")
    def setup(s):
        a(f"s_add_u32 s3, s53, {s}")
        a(f"s_and_b32 s3, s3, 3")
        blk = s >> 2
        if cmap == 0:
            if blk: a("s_add_u32 s3, s3, 4")
            sh = 2
        elif cmap == 1:
            a("s_lshl_b32 s3, s3, 1")
            if blk: a("s_add_u32 s3, s3, 1")
            sh = 0
        elif cmap == 2:
            a("s_and_b32 s75, s3, 2")
            a("s_add_u32 s3, s3, s75")
            if blk: a("s_add_u32 s3, s3, 2")
            sh = 1
        if blkx:
            a(f"s_lshl_b32 s75, s73, {sh}")
            a("s_xor_b32 s3, s3, s75")
        a(f"s_lshl_b32 s{69+s%2}, s3, 17")
        a(f"s_lshl_b32 s{71+s%2}, s3, 7")
    def xaddr(j):
        if j: a(f"s_add_u32 s79, s79, 4")
        if j >= 4:
            a("s_sub_u32 s75, s79, 36")
            a("s_cmp_ge_u32 s79, 36")
            a("s_cselect_b32 s79, s75, s79")
        a(f"s_lshl_b32 s{60+j}, s79, 10")
        a(f"s_lshl_b32 s75, s79, 13")
        a(f"v_add_u32 v{16+j}, s75, v10")
        a(f"v_min_u32 v{16+j}, 0x80000000, v{16+j}")
    def issue(s, lo=0, hi=13, first=False):
        if lo == 0 and hi > 0 and not first: setup(s)
        base = slot_of(s) * SLOT
        for k in range(lo, hi):
            if k < 4:
                a(f"s_add_u32 m0, s78, {base + k*1024}")
                a("s_nop 0")
                if not ("now0" in exp and s == 0): vq.issue(f"buffer_load_dwordx4 v{25+k}, s[24:27], s{69+s%2} offen {WF} lds", ("D", s))
            else:
                j = k - 4
                if first: xaddr(j)
                a(f"s_add_u32 m0, s{60+j}, {base}")
                a("s_nop 0")
                if not (("nox0" in exp and s == 0) or ("halfx0" in exp and s == 0 and j >= 5)): vq.issue(f"buffer_load_dwordx4 v{16+j}, s[20:23], s{71+s%2} offen nt lds", ("D", s))
    def w2p(PGs, vreg=47):
        for PG in PGs:
            P, sub = divmod(PG, 2)
            a(f"s_add_u32 m0, s74, {w2addr(P) + sub*4096}")
            a(f"s_add_u32 s75, s19, {P & 7}")
            a("s_and_b32 s75, s75, 7")
            a("s_lshl_b32 s75, s75, 16")
            a(f"s_add_u32 s75, s75, {sub*16384 + (P >> 3)*32768}")
            vq.issue(f"buffer_load_dwordx4 v{vreg}, s[28:31], s75 offen lds", ("W2",))
    setup(0)
    a("s_waitcnt lgkmcnt(0)")
    build_srds1()
    stamp(0)
    issue(0, 0, 12, first=True)
    xaddr(8)
    build_srds2()
    a("v_lshrrev_b32 v7, 1, v2")
    a("v_and_b32 v8, 1, v2")
    a("v_lshlrev_b32 v9, 10, v7")
    a("v_lshl_add_u32 v9, v8, 2, v9")
    a("s_lshl_b32 s3, s18, 4")
    a("s_add_u32 s3, s3, s58")
    a("v_add_u32 v30, s3, v9")
    a(f"s_mul_i32 s3, s50, {GSTR}")
    a(f"s_add_u32 s3, s3, {FLAG_OFF}")
    a("v_lshlrev_b32 v39, 4, v5")
    a("v_add_u32 v39, s3, v39")
    a("s_and_b32 s3, s49, 1")
    a("s_lshl_b32 s75, s51, 1")
    a("s_add_u32 s3, s3, s75")
    a("s_lshl_b32 s3, s3, 2")
    a("s_add_u32 s3, s3, s18")
    a("s_lshl_b32 s3, s3, 14")
    a("s_lshl_b32 s75, s19, 7")
    a("s_add_u32 s3, s3, s75")
    a("v_lshlrev_b32 v9, 10, v7")
    a("v_lshl_add_u32 v9, v8, 7, v9")
    a("v_add_u32 v32, s3, v9")
    a("s_lshl_b32 s3, s50, 3")
    a("v_add_u32 v33, s3, v5")
    a("v_cmp_eq_u32 s[80:81], s49, v2")
    def late_setup():
        a(f"s_mul_i32 s3, s18, {4*WPS}")
        a(f"s_add_u32 s3, s3, {WP}")
        a(f"v_mul_u32_u24 v31, {2*WPS}, v8")
        a("v_lshl_add_u32 v31, v7, 1, v31")
        a("v_add_u32 v31, s3, v31")
        a("v_lshlrev_b32 v9, 4, v2")
        a("v_add_u32 v29, s3, v9")
        for i in range(4): a(f"v_mov_b32 v{48+i}, 0")
        for sx in range(2):
            a(f"v_lshlrev_b32 v8, 3, v4")
            a(f"v_sub_u32 v8, v8, v6")
            a(f"v_add_u32 v8, {32*sx+8}, v8      ; u+8")
            a("v_and_b32 v9, 1, v8")
            a("v_mul_u32_u24 v9, 94, v9")
            a("v_lshl_add_u32 v9, v8, 1, v9")
            a("v_cmp_gt_u32 vcc, 39, v8")
            a("s_nop 1")
            a("v_cndmask_b32 v9, 0, v9, vcc")
            a(f"v_add_u32 v{42+sx}, s3, v9")
        a("s_lshr_b32 s3, s18, 1")
        a("s_lshl_b32 s3, s3, 2")
        a("v_add_u32 v8, s3, v4")
        a("v_lshlrev_b32 v8, 1, v8")
        a("v_xor_b32 v8, v8, v6            ; c8")
        a("v_lshlrev_b32 v8, 4, v8")
        a("s_lshl_b32 s3, s18, 2")
        a("v_add_u32 v9, s3, v4")
        a("v_lshl_add_u32 v8, v9, 10, v8")
        a("s_lshl_b32 s3, s19, 7            ; cb*256")
        a("v_add_u32 v47, s3, v8")
        a("s_lshl_b32 s74, s18, 10         ; lw*1024")
        a(f"s_mul_i32 s3, s18, {8*HTS}")
        a(f"s_add_u32 s3, s3, {HT}")
        a("v_lshlrev_b32 v12, 5, v6")
        a("v_add_u32 v12, s3, v12")
        a("v_and_b32 v13, 1, v4")
        a("v_lshl_add_u32 v13, v13, 4, v12")
        a("v_add_u32 v13, 64, v13            ; s=1 addr")
        a("v_lshl_add_u32 v12, v4, 4, v12    ; s=0 addr")
        a("s_lshl_b32 s3, s50, 18")
        a("s_lshl_b32 s75, s49, 11")
        a("s_add_u32 s3, s3, s75")
        a("s_lshl_b32 s75, s18, 8")
        a("s_add_u32 s3, s3, s75")
        a("v_lshlrev_b32 v14, 16, v4")
        a("v_lshl_add_u32 v14, v6, 4, v14")
        a("v_add_u32 v14, s3, v14")
        a(f"v_mov_b32 v38, {CNT}")
        a("v_mov_b32 v45, 1")
    TW = 128
    def toep(rho):
        a(f"ds_write_b16 v31, v{34+rho} offset:16")
        a(f"ds_write_b16 v31, v{34+rho} offset:110")
        a(f"ds_write_b16_d16_hi v31, v{34+rho} offset:{WPS+16}")
        a(f"ds_write_b16_d16_hi v31, v{34+rho} offset:{WPS+110}")
        for c in range(4):
            lc = 4*rho + c; o = c * (WPS // 4)
            for sx in range(2):
                w = TW + 8*lc + 4*sx
                a(f"ds_read2_b32 v[{w}:{w+1}], v{42+sx} offset0:{o} offset1:{o+1}")
                a(f"ds_read2_b32 v[{w+2}:{w+3}], v{42+sx} offset0:{o+2} offset1:{o+3}")
            a("s_waitcnt lgkmcnt(10)")
    if DWAT == 0:
        for i, o in enumerate((0, 8, 64, 72)):
            vq.issue(f"buffer_load_dword v{34+i}, v30, s[32:35], 0 offen offset:{o}", ("dw",))
        a("s_mov_b64 exec, 0xff")
        vq.issue("buffer_load_dwordx4 v[120:123], v39, s[40:43], 0 offen sc1", ("snap",))
        a("s_mov_b64 exec, -1")
    issue(0, 12, 13)
    issue(1, 0, ND1)
    vq.wait(("D", 0)); stamp(1); a("s_barrier")
    issue(1, ND1, 13); issue(2, 0, 6)
    vq.wait(("D", 1)); a("s_barrier")
    issue(2, 6, 13); issue(3)
    def dwsnap():
        for i, o in enumerate((0, 8, 64, 72)):
            vq.issue(f"buffer_load_dword v{34+i}, v30, s[32:35], 0 offen offset:{o}", ("dw",))
        a("s_mov_b64 exec, 0xff")
        vq.issue("buffer_load_dwordx4 v[120:123], v39, s[40:43], 0 offen sc1", ("snap",))
        a("s_mov_b64 exec, -1")
    if DWAT == 1: dwsnap()
    for s in range(2, 8):
        vq.wait(("D", s))
        if s in (4, 5, 7): stamp({4: 2, 5: 3, 7: 4}[s])
        a("s_barrier")
        if s + 2 <= 7: issue(s + 2)
        if s == LSET: late_setup()
        if s == 5:
            a("s_mov_b64 exec, 0xffffffff")
            vq.issue("buffer_load_dword v44, v32, s[28:31], 0 offen", ("pf",))
            a("s_mov_b64 exec, -1")
            a("s_getreg_b32 s3, hwreg(HW_REG_XCC_ID)")
            a("s_and_b32 s3, s3, 15")
            a("s_lshl_b32 s3, s3, 8")
            a("s_add_u32 s3, s3, 1")
            a("v_add_u32 v124, s3, v122")
            a("s_mov_b64 exec, s[80:81]")
            vq.issue("buffer_store_dword v124, v39, s[40:43], 0 offen offset:8", ("hello",))
            a("s_mov_b64 exec, -1")
        if s == 6:
            a("s_mov_b32 exec_hi, 0xffff")
            a("ds_write_b128 v29, v[48:51]")
            a("s_mov_b64 exec, -1")
            toep(0)
    w2p(list(range(12, 16)) + list(range(0, 12)))
    toep(1)
    a("v_add_u32 v16, 1, v120")
    a("v_add_u32 v17, 1, v121")
    a("v_mov_b32 v18, 2")
    a(f"v_lshrrev_b32 v7, 1, v5")
    a(f"v_mul_u32_u24 v7, {HTS}, v7")
    a("v_and_b32 v8, 1, v5")
    a("v_lshl_add_u32 v7, v8, 3, v7")
    a("s_mov_b64 exec, 0xff")
    a(f"v_add_u32 v7, {MBX}, v7")
    a("ds_write_b64 v7, v[120:121]")
    a("s_mov_b64 exec, -1")
    a("s_waitcnt lgkmcnt(0)")
    a("s_setprio 2")
    CD = 48; CA = 80; CT = 112
    def flag(h):
        if h == 1:
            a("s_mov_b64 exec, 0xff")
            vq.issue("buffer_load_dword v125, v39, s[40:43], 0 offen offset:8 sc1", ("S", 1))
        a("s_mov_b64 exec, 1")
        vq.wait(("S", h))
        a(f"ds_add_rtn_u32 v46, v38, v45 offset:{4*h}")
        a("s_waitcnt lgkmcnt(0)")
        a("v_cmp_eq_u32 vcc, 3, v46")
        a("s_nop 4")
        a(f"s_cbranch_vccz L_noflag{h}")
        a("s_mov_b64 exec, s[80:81]")
        a(f"buffer_store_dword v{16+h}, v39, s[40:43], 0 offen offset:{4*h}")
        if h == 1:
            a("s_mov_b64 exec, 0xff")
            a("v_cmp_ne_u32 vcc, v124, v125")
            a("s_nop 4")
            a(f"s_cbranch_vccz L_noflag{h}")
            a("s_mov_b64 exec, s[80:81]")
            a("buffer_store_byte v18, v33, s[44:47], 0 offen sc1")
        a.label(f"L_noflag{h}")
        a("s_mov_b64 exec, -1")
        stamp(7 + 3*h)
    def conv_half(h):
        lq = LQ(a)
        CP = 64 if h == 0 else 48
        def cread(c):
            d = CD + (c % 4)*8
            off = (32*h + c) * HTS
            lq.issue(f"ds_read_b128 v[{d}:{d+3}], v12 offset:{off}", ("c", c))
            lq.issue(f"ds_read_b128 v[{d+4}:{d+7}], v13 offset:{off}", ("c", c))
        def mf(c):
            d = CD + (c % 4)*8; w = TW + 8*(8*h + c); ac = CA + 4*c
            lq.wait([("c", c)])
            a(f"v_mfma_f32_16x16x32_bf16 v[{ac}:{ac+3}], v[{d}:{d+3}], v[{w}:{w+3}], 0")
            a(f"v_mfma_f32_16x16x32_bf16 v[{ac}:{ac+3}], v[{d+4}:{d+7}], v[{w+4}:{w+7}], v[{ac}:{ac+3}]")
            if c + 4 < 8: cread(c + 4)
        for c in range(4): cread(c)
        for c in range(8): mf(c)
        for c in range(8):
            ac = CA + 4*c
            for o in sigmul_ops(ac, ac, ac, CT + (c % 2)*4): a(o)
        for r in range(4):
            for e in range(4):
                a(f"v_cvt_pk_bf16_f32 v{CP+4*r+e}, v{CA+8*e+r}, v{CA+8*e+4+r}")
            a(f"s_mov_b32 s3, {r*16384}")
            vq.issue(f"buffer_store_dwordx4 v[{CP+4*r}:{CP+4*r+3}], v14, s[40:43], s3 offen offset:{1024*h} sc1", ("S", h))
        stamp(6 + 3*h)
    a("s_barrier")
    stamp(5)
    conv_half(0)
    toep(2)
    flag(0)
    toep(3)
    a("s_waitcnt lgkmcnt(0)")
    a("s_barrier")
    stamp(8)
    conv_half(1)
    flag(1)
    a("s_cmp_lg_u32 s18, 0")
    a("s_cbranch_scc1 L_lnopoll")
    poll(39, 4, False, 121, 64, 33, "L_pollB")
    a.label("L_lnopoll")
    stamp(11)
    a("s_barrier")
    a("s_branch L_fin")

    a.label("L_compute")
    role[0] = "C"
    a("s_waitcnt lgkmcnt(0)")
    build_srds1(); build_srds2()
    for i in range(4): a(f"v_mov_b32 v{252+i}, 0")
    a(f"v_mov_b32 v15, {CNT}")
    a("ds_write_b128 v15, v[252:255]")
    if CPF == 2:
        a("s_getpc_b64 s[78:79]")
        a.label("L_pc2")
        a("s_sub_u32 s78, s78, L_pc2-L_start")
        a("s_subb_u32 s79, s79, 0")
        a("v_lshlrev_b32 v251, 7, v0")
        a("v_min_u32 v251, L_end-L_start, v251")
        a("global_load_dword v252, v251, s[78:79]")
    if codepf and CPF == 1:
        a("s_cmp_lg_u32 s48, 1")
        a("s_cbranch_scc1 L_nopf")
        a("s_getpc_b64 s[78:79]")
        a.label("L_pc")
        a("s_sub_u32 s78, s78, L_pc-L_start")
        a("s_subb_u32 s79, s79, 0")
        a("s_lshr_b32 s3, s2, 3")
        a("s_lshl_b32 s3, s3, 10")
        a("v_lshlrev_b32 v251, 7, v2")
        a("v_add_u32 v251, s3, v251")
        a("v_min_u32 v251, L_end-L_start, v251")
        a("s_mov_b64 exec, 0xff")
        a("global_load_dword v252, v251, s[78:79]")
        a("s_mov_b64 exec, -1")
        a.label("L_nopf")
    a("s_lshr_b32 s60, s48, 1          ; wr")
    a("s_and_b32 s61, s48, 1           ; wc")
    a("s_mul_i32 s3, s60, 144")
    a("v_add_u32 v7, s3, v6")
    a("v_lshrrev_b32 v8, 1, v6")
    a("v_xor_b32 v8, v8, v4")
    a("v_lshlrev_b32 v8, 4, v8")
    a("v_lshl_add_u32 v8, v7, 7, v8")
    a("v_xor_b32 v9, 64, v8")
    a("v_lshrrev_b32 v7, 2, v6            ; i>>2")
    a("v_and_b32 v10, 1, v4")
    a("v_lshl_add_u32 v10, v10, 2, v7     ; w")
    a("v_lshlrev_b32 v10, 5, v10")
    a("v_and_b32 v11, 3, v6")
    a("v_lshl_add_u32 v10, v11, 3, v10    ; + (i&3)*8")
    a("v_lshl_add_u32 v7, v4, 3, v7       ; 8g + (i>>2)")
    a("v_lshl_add_u32 v224, v7, 8, v10")
    for t in range(1, 8): a(f"v_xor_b32 v{224+t}, {32*t}, v224")
    a("s_lshl_b32 s3, s61, 5")
    a("v_xor_b32 v10, s3, v224             ; t = wc")
    a(f"v_add_u32 v10, {WB}, v10")
    a("v_xor_b32 v11, 64, v10             ; a1: t^2")
    a("v_xor_b32 v12, 128, v10            ; b0: t^4")
    a("v_xor_b32 v13, 192, v10            ; b1: t^6")
    a(f"v_mov_b32 v15, {CNT}")
    a("v_mov_b32 v5, 1")
    a("s_lshr_b32 s3, s18, 1")
    a("s_lshl_b32 s3, s3, 2")
    a("v_add_u32 v3, s3, v4")
    a("v_lshlrev_b32 v3, 1, v3")
    a("v_xor_b32 v3, v3, v6            ; c8")
    a("v_lshlrev_b32 v3, 4, v3")
    a("s_lshl_b32 s3, s18, 2")
    a("v_add_u32 v7, s3, v4")
    a("v_lshl_add_u32 v3, v7, 10, v3")
    a("s_lshl_b32 s3, s19, 7            ; cb*256")
    a("v_add_u32 v3, s3, v3")
    a("s_lshl_b32 s74, s18, 10")
    a("s_lshl_b32 s3, s61, 4")
    a("v_add_u32 v7, s3, v6")
    a(f"v_mul_u32_u24 v7, {HTS}, v7")
    a("v_lshl_add_u32 v7, v4, 3, v7")
    a("s_mul_i32 s3, s60, 288")
    a(f"s_add_u32 s3, s3, {HT}")
    a("v_add_u32 v14, s3, v7")
    a("s_and_b32 s60, s49, 1             ; hf")
    a("s_lshr_b32 s61, s49, 1            ; cb")
    a("s_lshl_b32 s3, s60, 2")
    a("s_add_u32 s3, s3, s48")
    a("s_lshl_b32 s59, s3, 15")
    a("s_lshl_b32 s75, s50, 18")
    a("s_add_u32 s3, s59, s75")
    a("v_lshlrev_b32 v232, 4, v2")
    a("v_add_u32 v232, s3, v232")
    a("v_add_u32 v233, 16384, v232")
    for j in range(8):
        a(f"s_add_u32 s3, s19, {j}")
        a("s_and_b32 s3, s3, 7")
        a(f"s_lshl_b32 s{62+j}, s3, 11")
    a(f"s_mul_i32 s3, s50, {GSTR}")
    a(f"s_add_u32 s3, s3, {FLAG_OFF}")
    a("v_and_b32 v7, 7, v2")
    a("v_lshlrev_b32 v234, 4, v7")
    a("v_add_u32 v234, s3, v234")
    a("s_lshl_b32 s3, s50, 3")
    a("v_add_u32 v248, s3, v7")
    a("v_lshrrev_b32 v249, 1, v7")
    a(f"v_mul_u32_u24 v249, {HTS}, v249")
    a("v_and_b32 v7, 1, v7")
    a("v_lshl_add_u32 v249, v7, 3, v249")
    a(f"v_add_u32 v249, {MBX}, v249")
    a("s_lshl_b32 s3, s48, 13")
    a(f"s_add_u32 s3, s3, {OST}")
    a("v_lshrrev_b32 v235, 1, v4")
    a("v_xor_b32 v235, v235, v6")
    a("v_lshlrev_b32 v235, 4, v235")
    a("v_and_b32 v7, 1, v4")
    a("v_lshl_add_u32 v235, v7, 3, v235")
    a("v_lshl_add_u32 v235, v6, 8, v235")
    a("v_add_u32 v235, s3, v235")
    for T_ in range(1, 8): a(f"v_xor_b32 v{235+T_}, {32*T_}, v235")
    a("v_xor_b32 v243, v6, v4")
    a("v_lshlrev_b32 v243, 4, v243")
    a("v_lshl_add_u32 v243, v4, 8, v243")
    a("v_add_u32 v243, s3, v243")
    for n in range(1, 4): a(f"v_xor_b32 v{243+n}, {64*n}, v243")
    a("s_lshl_b32 s75, s61, 8")
    a("s_add_u32 s3, s59, s75")
    a("v_lshlrev_b32 v247, 4, v6")
    a("v_lshl_add_u32 v247, v4, 10, v247")
    a("v_add_u32 v247, s3, v247")
    ACC = 16; AR = 160; NA = 8; BR = 192
    def acc(rt, c): b = ACC + (rt*4 + c)*4; return f"v[{b}:{b+3}]"
    def areg(n): b = AR + (n % NA)*4; return f"v[{b}:{b+3}]"
    def breg(kk, c, h=None):
        b = BR + (kk % 2)*16 + c*4
        if h is None: return f"v[{b}:{b+3}]"
        return f"v[{b+2*h}:{b+2*h+1}]"
    lq = LQ(a)
    NSTEP = 144
    def readA(n):
        s, r = divmod(n % NSTEP if n < NSTEP else n - 18, 18); ks, rt = divmod(r, 9)
        lq.issue(f"ds_read_b128 {areg(n)}, v{8+ks} offset:{rt*2048}", ("A", n))
    def readB(kk, c):
        ks = kk % 2
        for h in range(2):
            lq.issue(f"ds_read_b64_tr_b16 {breg(kk,c,h)}, v{10+c} offset:{ks*8192 + h*1024}", ("B", kk, c))
    def switch_slot(s):
        d = (slot_of(s) - slot_of(s-1)) * SLOT
        for r in range(8, 14):
            if d > 0: a(f"v_add_u32 v{r}, {d}, v{r}")
            else: a(f"v_subrev_u32 v{r}, {-d}, v{r}")
    PD = 6; BARP = 4
    stamp(0)
    a("s_waitcnt lgkmcnt(0)")
    a("s_barrier")
    stamp(1)
    for c in range(4): readB(0, c)
    for n in range(4): readA(n)
    nextA = 4
    for n in range(NSTEP):
        s, r = divmod(n, 18); ks, rt = divmod(r, 9)
        kk = s*2 + ks
        if r == 18 - BARP and s < 7:
            lq.waitall()
            a("s_barrier")
            switch_slot(s + 1)
            if probe == ("C", 100 + s + 1): a("s_memrealtime s[84:85]")
            encst(100 + s + 1)
            if s + 1 in (4, 5, 7) and not G2ST: stamp({4: 2, 5: 3, 7: 4}[s+1])
        lim_stage = s + 1 if r >= 18 - BARP else s
        def canA(m): return m < NSTEP and m // 18 <= lim_stage and m < n + NA
        pend = []
        if ks == 0 and 2 <= rt <= 5: pend.append(("B", kk+1, rt-2))
        if ks == 1 and s < 7 and r >= 18 - BARP and r < 18 - BARP + 2:
            o = (r - (18 - BARP)) * 2
            pend.append(("B", kk+1, o)); pend.append(("B", kk+1, o+1))
        cnt = 0
        while canA(nextA) and nextA <= n + PD + (1 if (r >= 9 or s == 7) else 0) and cnt < 2:
            pend.append(("A", nextA)); nextA += 1; cnt += 1
        need = [("A", n)] + ([("B", kk, c) for c in range(4)] if rt == 0 else [])
        lq.wait(need)
        cs = (0, 2) if (DEFER and s == 7) else (0, 1, 2, 3)
        for ci, c in enumerate(cs):
            cin = "0" if kk == 0 else acc(rt, c)
            a(f"v_mfma_f32_16x16x32_bf16 {acc(rt,c)}, {areg(n)}, {breg(kk,c)}, {cin}")
            rem = len(cs) - ci
            k = (len(pend) + rem - 1) // rem if pend else 0
            for _ in range(k):
                p = pend.pop(0)
                if p[0] == "A": readA(p[1])
                else: readB(p[1], p[2])
        if r == 18 - BARP - 1:
            assert nextA >= min(NSTEP, (s+1)*18), (n, nextA)
    stamp(5)
    def glu(j):
        def wr(rt):
            av = ACC + (rt*4 + j)*4
            lq.issue(f"ds_write_b64 v14, v[{av}:{av+1}] offset:{j*32*HTS + rt*32}", ("w", j, rt))
        for rt in range(9):
            av = ACC + (rt*4 + j)*4; bv = ACC + (rt*4 + 2 + j)*4
            if j == 1 and rt == W2AT: w2p(range(16, 30), 3)
            for o in sigmul_ops(bv, bv, av, bv): a(o)
            a(f"v_cvt_pk_bf16_f32 v{av}, v{bv}, v{bv+1}")
            a(f"v_cvt_pk_bf16_f32 v{av+1}, v{bv+2}, v{bv+3}")
            if not LATEW[j]: wr(rt)
        if LATEW[j]:
            for rt in range(9): wr(rt)
        lq.waitall()
    a("s_nop 3")
    glu(0)
    stamp(6)
    a("s_barrier")
    if DEFER:
        nextA = NSTEP + 6
        for n in range(NSTEP, NSTEP + 18):
            ks, rt = divmod(n - NSTEP, 9); kk = 14 + ks
            lq.wait([("A", n)])
            for c in (1, 3):
                a(f"v_mfma_f32_16x16x32_bf16 {acc(rt,c)}, {areg(n)}, {breg(kk,c)}, {acc(rt,c)}")
                if nextA < NSTEP + 18 and nextA < n + NA: readA(nextA); nextA += 1
            if n == NSTEP + 14:
                lq.waitall()
                a("s_mov_b64 exec, 1")
                lq.issue("ds_add_u32 v15, v5 offset:12", ("e0",))
                a("s_mov_b64 exec, -1")
        a("s_nop 3")
    assert not DEFER
    vq = VQ(a)
    stamp(7)
    lq.issue("ds_read_b64 v[250:251], v249", ("mb",))
    glu(1)
    stamp(8)
    a("s_barrier")
    stamp(9)
    w2p([30, 31], 3)
    a(f"s_setprio {PR[1]}")
    a("s_cmp_lg_u32 s48, 0")
    a("s_cbranch_scc1 L_waitgo")
    a(f"s_setprio {PR[0]}")
    poll(234, 0, True, 250, 28, 248, "L_pollA")
    a("ds_write_b32 v15, v5 offset:8")
    a("s_branch L_go")
    a.label("L_waitgo")
    spin_lds(15, 8, 7, 1, "L_wg", sleep=1)
    a.label("L_go")
    a("s_waitcnt lgkmcnt(0)")
    stamp(10)
    A2 = 96; NA2 = 8; B2 = 160; NB2 = 8; AC2 = 32
    vq = VQ(a)
    def loadA(P):
        h, j = divmod(P, 8)
        for r2 in range(2):
            b = A2 + (P % NA2)*8 + 4*r2
            vq.issue(f"buffer_load_dwordx4 v[{b}:{b+3}], v{232+r2}, s[40:43], s{62+j} offen offset:{h*1024} sc1", P)
    lq = LQ(a)
    def readB2(f):
        P, T_ = divmod(f, 8)
        ad = w2addr(P)
        if P == 1: a(f"v_add_u32 v{16+T_}, 65536, v{224+T_}")
        reg = 224 + T_ if ad < 65536 else 16 + T_
        ad %= 65536
        b = B2 + (f % NB2)*4
        for h in range(2):
            lq.issue(f"ds_read_b64_tr_b16 v[{b+2*h}:{b+2*h+1}], v{reg} offset:{ad + h*1024}", ("B", f))
    for P in range(6): loadA(P)
    nextL = 6
    BD = 6
    for f in range(BD): readB2(f)
    a("s_setprio 0")
    for P in range(16):
        if P == X3P:
            a("s_barrier")
            stamp(12)
        vq.wait(P)
        if P == 0: stamp(11)
        if G2ST and P in (2, 4, 5, 8, 9, 10, 12, 14): stamp({2:0, 4:1, 5:2, 8:3, 9:4, 10:5, 12:6, 14:7}[P])
        for T_ in range(8):
            f = P*8 + T_
            lq.wait([("B", f)])
            b = B2 + (f % NB2)*4
            for r2 in range(2):
                ab = A2 + (P % NA2)*8 + 4*r2
                ac = AC2 + (r2*8 + T_)*4
                cin = "0" if P == 0 else f"v[{ac}:{ac+3}]"
                a(f"v_mfma_f32_16x16x32_bf16 v[{ac}:{ac+3}], v[{b}:{b+3}], v[{ab}:{ab+3}], {cin}")
                if r2 == 0 and f + BD < 128: readB2(f + BD)
            if T_ % 2 == 0 and nextL < 16 and nextL < P + NA2 and (nextL < 8 or P >= X3P):
                loadA(nextL); nextL += 1
    stamp(13)
    a("s_nop 3")
    PK = 96; RB = 128
    lq = LQ(a)
    def ostore(n):
        if n: a(f"v_add_u32 v247, 4096, v247")
        lq.wait([("r", n)])
        a(f"buffer_store_dwordx4 v[{RB+4*n}:{RB+4*n+3}], v247, s[36:39], 0 offen {outflag}")
    for r2 in range(2):
        for T_ in range(8):
            ac = AC2 + (r2*8 + T_)*4; p = PK + (r2*8 + T_)*2
            a(f"v_cvt_pk_bf16_f32 v{p}, v{ac}, v{ac+1}")
            a(f"v_cvt_pk_bf16_f32 v{p+1}, v{ac+2}, v{ac+3}")
            if r2 == 1 and T_ >= 3 and T_ < 7: ostore(T_ - 3)
            lq.issue(f"ds_write_b64 v{235+T_}, v[{p}:{p+1}] offset:{r2*4096}", ("w", r2, T_))
        for n in range(4*r2, 4*r2+4):
            lq.issue(f"ds_read_b128 v[{RB+4*n}:{RB+4*n+3}], v{243+n%4} offset:{n*1024}", ("r", n))
    for n in range(4, 8): ostore(n)
    if probe:
        a("s_waitcnt vmcnt(0) lgkmcnt(0)")
        if enc:
            a("s_sub_u32 s3, s90, s88")
            if enc[0] == "cyc": a("s_lshr_b32 s3, s3, 3")
            else: a("s_lshl_b32 s3, s3, 1")
            a("s_add_u32 s84, s84, s3")
        a.label("L_spin")
        a("s_memrealtime s[86:87]")
        a("s_waitcnt lgkmcnt(0)")
        a("s_sub_u32 s3, s86, s84")
        a("s_cmp_lt_i32 s3, 3000")
        a("s_cbranch_scc1 L_spin")
    a.label("L_fin")
    if stamps:
        a("s_waitcnt vmcnt(0)")
        a("s_memtime s[20:21]")
        a("s_memrealtime s[22:23]")
        a("s_waitcnt lgkmcnt(0)")
        a("s_cmp_lg_u32 s18, 0")
        a("s_cbranch_scc1 L_end")
        a("s_lshl_b32 s3, s2, 8")
        a("s_lshl_b32 s24, s48, 5")
        a("s_add_u32 s3, s3, s24")
        a(f"s_add_u32 s3, s3, {STAMP_OFF}")
        a("v_mov_b32 v25, s3")
        a("s_mov_b64 exec, 1")
        regs = [84, 22, 20] + SREGS
        for i, r in enumerate(regs):
            if i >= 2: a(f"s_sub_u32 s{r}, s{r}, s82")
            a(f"v_mov_b32 v20, s{r}")
            a(f"buffer_store_dword v20, v25, s[40:43], 0 offen offset:{4*i}")
    a.label("L_end")
    a("s_endpgm")
    return wrap_single(a.text(), 256, 512, 163840)

if __name__ == "__main__":
    open("k8.s", "w").write(gen(False))
    open("k8_st.s", "w").write(gen(True))
    P = ("C", 99)
    open("k8_r0.s", "w").write(gen(False, probe=P))
    open("k8_r1.s", "w").write(gen(False, probe=P, enc=("cyc", 1, 104)))
    open("k8_r2.s", "w").write(gen(False, probe=P, enc=("rt", 1, 104)))
    open("k8_r3.s", "w").write(gen(False, probe=P, enc=("cyc", 5, 6)))
    open("k8_r4.s", "w").write(gen(False, probe=P, enc=("rt", 5, 6)))
    open("k8_r5.s", "w").write(gen(False, probe=P, enc=("cyc", 104, 107)))
```

```python
import sys
from asmlib import *

SLOT = 53248
WB = 36864
HT = 125952
HTS = 592
WPS = 192
WP = 122880
MBX = HT + 59*HTS + 576
CNT = HT + 63*HTS + 576
GSTR = 4352
OST = 131072
FLAG_OFF = 0x1000000
STAMP_OFF = 0x4000000
SREGS = [86,88,90,92,94,96,98,100,4,6,8,10,12,14,16]

def slot_of(s): return s % 3
def w2addr(P):
    if P < 6: return P*8192
    if P < 8: return 106496 + (P-6)*8192
    if P < 15: return 49152 + (P-8)*8192
    return 122880

class LQ:
    def __init__(self, a): self.a = a; self.q = []
    def issue(self, instr, tag):
        self.a(instr); self.q.append(tag)
        assert len(self.q) <= 15, "too many outstanding lds ops"
    def wait(self, tags):
        idx = -1
        for i, t in enumerate(self.q):
            if t in tags: idx = i
        if idx < 0: return
        n = len(self.q) - idx - 1
        self.a(f"s_waitcnt lgkmcnt({n})")
        self.q = self.q[idx+1:]
    def waitall(self):
        self.a("s_waitcnt lgkmcnt(0)"); self.q = []

class VQ:
    def __init__(self, a): self.a = a; self.q = []
    def issue(self, instr, tag): self.a(instr); self.q.append(tag); assert len(self.q) <= 63
    def wait(self, tag):
        idx = max(i for i, t in enumerate(self.q) if t == tag)
        self.a(f"s_waitcnt vmcnt({len(self.q)-idx-1})")
        del self.q[:idx+1]
    def waitall(self): self.a("s_waitcnt vmcnt(0)"); self.q = []

def sigmul_ops(dst, bv, av, t):
    o = []
    o.append(f"v_pk_mul_f32 v[{t}:{t+1}], v[{bv}:{bv+1}], s[76:77]")
    o.append(f"v_pk_mul_f32 v[{t+2}:{t+3}], v[{bv+2}:{bv+3}], s[76:77]")
    for e in range(4): o.append(f"v_exp_f32 v{t+e}, v{t+e}")
    o.append(f"v_pk_add_f32 v[{t}:{t+1}], v[{t}:{t+1}], 1.0 op_sel_hi:[1,0]")
    o.append(f"v_pk_add_f32 v[{t+2}:{t+3}], v[{t+2}:{t+3}], 1.0 op_sel_hi:[1,0]")
    for e in range(4): o.append(f"v_rcp_f32 v{t+e}, v{t+e}")
    o.append(f"v_pk_mul_f32 v[{dst}:{dst+1}], v[{t}:{t+1}], v[{av}:{av+1}]")
    o.append(f"v_pk_mul_f32 v[{dst+2}:{dst+3}], v[{t+2}:{t+3}], v[{av+2}:{av+3}]")
    return o

def gen(stamps=False, codepf=True, X3P=6, W2AT=0, G2ST=False, LSET=6, DWAT=1, CPF=1, probe=None, enc=None, ND1=6, WF='', LATEW=(0,1), PR=(3,3), NF=24, outflag="nt", DEFER=0, NPRE=7, cmap=0, blkx=False, exp=()):
    a = Asm()
    role = ["L"]
    def encst(i):
        if enc and role[0] == "C" and enc[0] != "blk":
            ins = "s_memtime" if enc[0] == "cyc" else "s_memrealtime"
            if i == enc[1]: a(f"{ins} s[88:89]")
            if i == enc[2]: a(f"{ins} s[90:91]")
    def stamp(i):
        if probe == (role[0], i): a("s_memrealtime s[84:85]")
        encst(i)
        if stamps:
            r = SREGS[i]; a(f"s_memtime s[{r}:{r+1}]")
    def spin_lds(addr, off, tmp, val, lab, sleep=1):
        a("s_mov_b32 s75, 0")
        a.label(lab)
        a(f"ds_read_b32 v{tmp}, v{addr} offset:{off}")
        a("s_add_u32 s75, s75, 1")
        a("s_waitcnt lgkmcnt(0)")
        a(f"v_cmp_ne_u32 vcc, {val}, v{tmp}")
        a("s_cmp_gt_u32 s75, 0x800000")
        a(f"s_cbranch_scc1 {lab}_d")
        a("s_nop 2")
        a(f"s_cbranch_vccz {lab}_d")
        a(f"s_sleep {sleep}")
        a(f"s_branch {lab}")
        a.label(lab + "_d")
    def poll(addr, off, wide, snap, tmp, saddr, lab):
        def fload():
            if wide: a(f"buffer_load_dwordx2 v[{tmp}:{tmp+1}], v{addr}, s[40:43], 0 offen offset:{off} sc1")
            else: a(f"buffer_load_dword v{tmp}, v{addr}, s[40:43], 0 offen offset:{off} sc1")
        def fcmp():
            if wide: a(f"v_cmp_eq_u64 vcc, v[{snap}:{snap+1}], v[{tmp}:{tmp+1}]")
            else: a(f"v_cmp_eq_u32 vcc, v{snap}, v{tmp}")
        a("s_mov_b64 exec, 0xff")
        a("s_mov_b32 s3, 0")
        a.label(lab)
        fload()
        a("s_add_u32 s3, s3, 1")
        a("s_waitcnt vmcnt(0)")
        fcmp()
        a("s_nop 4")
        a(f"s_cbranch_vccz {lab}_done")
        a(f"s_cmp_lt_u32 s3, {NF}")
        a(f"s_cbranch_scc1 {lab}")
        a(f"buffer_load_ubyte v{tmp+2}, v{saddr}, s[44:47], 0 offen sc1")
        a("s_waitcnt vmcnt(0)")
        a(f"v_cmp_ne_u32 s[72:73], 2, v{tmp+2}")
        a("s_nop 4")
        a("s_and_b64 s[72:73], s[72:73], vcc")
        a(f"s_cbranch_scc0 {lab}_done")
        a("s_sleep 8")
        a("s_cmp_lt_u32 s3, 0x80000")
        a(f"s_cbranch_scc1 {lab}")
        a.label(lab + "_done")
        a("s_mov_b64 exec, -1")
    a.label("L_start")
    if probe: a("s_memrealtime s[84:85]")
    if stamps:
        a("s_memtime s[82:83]")
        a("s_memrealtime s[84:85]")
    a("""
    s_cmp_ge_u32 s2, 256
    s_cbranch_scc1 L_end
    s_load_dwordx8 s[4:11], s[0:1], 0     ; x, w1, dw, w2
    s_load_dwordx4 s[12:15], s[0:1], 32
    s_load_dwordx2 s[16:17], s[0:1], 48   ; ws
    v_lshrrev_b32 v1, 6, v0
    v_and_b32 v2, 63, v0                  ; lane
    s_and_b32 s54, s2, 7                  ; xcd
    v_readfirstlane_b32 s48, v1
    s_lshr_b32 s51, s2, 3
    s_and_b32 s49, s51, 7                 ; ct
    s_lshr_b32 s51, s51, 3                ; rt&3
    s_lshl_b32 s50, s54, 2
    s_add_u32 s50, s50, s51               ; rt
    s_lshr_b32 s55, s50, 4                ; batch
    s_and_b32 s56, s50, 15
    s_mul_i32 s56, s56, 250               ; row0
    s_sub_u32 s52, s56, 15
    s_mul_i32 s57, s55, 4096000
    s_add_u32 s53, s49, s50
    s_and_b32 s53, s53, 3                 ; rot r
    s_mov_b32 s22, 4096000
    s_mov_b32 s23, 0x20000
    s_mov_b32 s26, 1048576
    s_mov_b32 s27, 0x20000
    s_lshl_b32 s58, s49, 7                ; ct*128
    s_and_b32 s18, s48, 3                 ; w & 3
    v_lshrrev_b32 v4, 4, v2               ; l>>4  (q / g)
    v_and_b32 v6, 15, v2                  ; l&15
    s_cmp_lt_u32 s48, 4
    s_cbranch_scc1 L_compute
    """)
    def build_srds1():
        a("""
        s_add_u32 s20, s4, s57
        s_addc_u32 s21, s5, 0
        s_mov_b32 s24, s6
        s_mov_b32 s25, s7
        """)
    def build_srds2():
        a("""
        s_mov_b32 s28, s10
        s_mov_b32 s29, s11
        s_mov_b32 s30, 524288
        s_mov_b32 s31, 0x20000
        s_mov_b32 s32, s8
        s_mov_b32 s33, s9
        s_mov_b32 s34, 31744
        s_mov_b32 s35, 0x20000
        s_lshl_b32 s59, s56, 10
        s_add_u32 s59, s59, s57
        s_add_u32 s36, s12, s59
        s_addc_u32 s37, s13, 0
        s_mov_b32 s38, 256000
        s_mov_b32 s39, 0x20000
        s_mov_b32 s40, s16
        s_mov_b32 s41, s17
        s_mov_b32 s42, 0x8000000
        s_mov_b32 s43, 0x20000
        s_mov_b32 s44, s14
        s_mov_b32 s45, s15
        s_mov_b32 s46, 256
        s_mov_b32 s47, 0x20000
        s_mov_b32 s76, 0xbfb8aa3b
        s_mov_b32 s77, 0xbfb8aa3b
        s_and_b32 s19, s49, 6           ; 2*cb
        """)
    a("v_lshlrev_b32 v7, 1, v4")
    a("v_xor_b32 v7, v7, v6            ; c8 for j=0,1")
    a("v_lshrrev_b32 v8, 3, v7")
    a("v_and_b32 v9, 7, v7")
    a("v_lshlrev_b32 v9, 4, v9")
    a("v_lshl_add_u32 v9, v8, 10, v9")
    a("s_lshl_b32 s19, s18, 4")
    a("v_add_u32 v8, s19, v4           ; kr j=0")
    a("v_lshl_add_u32 v9, v8, 11, v9")
    a("v_add_u32 v25, s58, v9")
    a("v_add_u32 v26, 8192, v25")
    a("v_xor_b32 v27, 1024, v25")
    a("v_add_u32 v27, 16384, v27")
    a("v_add_u32 v28, 8192, v27")
    a("s_lshl_b32 s78, s18, 12")
    a(f"s_add_u32 s78, s78, {WB}")
    a("v_lshrrev_b32 v3, 3, v2   ; l>>3")
    a("v_and_b32 v5, 7, v2")
    a("v_add_u32 v10, s52, v3")
    a("s_lshl_b32 s3, s18, 2")
    a("v_add_u32 v11, s3, v4")
    a("v_and_b32 v11, 7, v11           ; swz")
    a("v_xor_b32 v11, v11, v5")
    a("v_lshlrev_b32 v11, 4, v11")
    a("v_lshl_add_u32 v10, v10, 10, v11")
    a("s_lshr_b32 s3, s49, 2           ; hb")
    a("s_mul_i32 s3, s3, 18")
    a("s_add_u32 s79, s3, s18           ; p_0")
    vq = VQ(a)
    if blkx: a("s_and_b32 s73, s54, 1")
    def setup(s):
        a(f"s_add_u32 s3, s53, {s}")
        a(f"s_and_b32 s3, s3, 3")
        blk = s >> 2
        if cmap == 0:
            if blk: a("s_add_u32 s3, s3, 4")
            sh = 2
        elif cmap == 1:
            a("s_lshl_b32 s3, s3, 1")
            if blk: a("s_add_u32 s3, s3, 1")
            sh = 0
        elif cmap == 2:
            a("s_and_b32 s75, s3, 2")
            a("s_add_u32 s3, s3, s75")
            if blk: a("s_add_u32 s3, s3, 2")
            sh = 1
        if blkx:
            a(f"s_lshl_b32 s75, s73, {sh}")
            a("s_xor_b32 s3, s3, s75")
        a(f"s_lshl_b32 s{69+s%2}, s3, 17")
        a(f"s_lshl_b32 s{71+s%2}, s3, 7")
    def xaddr(j):
        if j: a(f"s_add_u32 s79, s79, 4")
        if j >= 4:
            a("s_sub_u32 s75, s79, 36")
            a("s_cmp_ge_u32 s79, 36")
            a("s_cselect_b32 s79, s75, s79")
        a(f"s_lshl_b32 s{60+j}, s79, 10")
        a(f"s_lshl_b32 s75, s79, 13")
        a(f"v_add_u32 v{16+j}, s75, v10")
        a(f"v_min_u32 v{16+j}, 0x80000000, v{16+j}")
    def issue(s, lo=0, hi=13, first=False):
        if lo == 0 and hi > 0 and not first: setup(s)
        base = slot_of(s) * SLOT
        for k in range(lo, hi):
            if k < 4:
                a(f"s_add_u32 m0, s78, {base + k*1024}")
                a("s_nop 0")
                if not ("now0" in exp and s == 0): vq.issue(f"buffer_load_dwordx4 v{25+k}, s[24:27], s{69+s%2} offen {WF} lds", ("D", s))
            else:
                j = k - 4
                if first: xaddr(j)
                a(f"s_add_u32 m0, s{60+j}, {base}")
                a("s_nop 0")
                if not (("nox0" in exp and s == 0) or ("halfx0" in exp and s == 0 and j >= 5)): vq.issue(f"buffer_load_dwordx4 v{16+j}, s[20:23], s{71+s%2} offen nt lds", ("D", s))
    def w2p(PGs, vreg=47):
        for PG in PGs:
            P, sub = divmod(PG, 2)
            a(f"s_add_u32 m0, s74, {w2addr(P) + sub*4096}")
            a(f"s_add_u32 s75, s19, {P & 7}")
            a("s_and_b32 s75, s75, 7")
            a("s_lshl_b32 s75, s75, 16")
            a(f"s_add_u32 s75, s75, {sub*16384 + (P >> 3)*32768}")
            vq.issue(f"buffer_load_dwordx4 v{vreg}, s[28:31], s75 offen lds", ("W2",))
    setup(0)
    a("s_waitcnt lgkmcnt(0)")
    build_srds1()
    stamp(0)
    issue(0, 0, 12, first=True)
    xaddr(8)
    build_srds2()
    a("v_lshrrev_b32 v7, 1, v2")
    a("v_and_b32 v8, 1, v2")
    a("v_lshlrev_b32 v9, 10, v7")
    a("v_lshl_add_u32 v9, v8, 2, v9")
    a("s_lshl_b32 s3, s18, 4")
    a("s_add_u32 s3, s3, s58")
    a("v_add_u32 v30, s3, v9")
    a(f"s_mul_i32 s3, s50, {GSTR}")
    a(f"s_add_u32 s3, s3, {FLAG_OFF}")
    a("v_lshlrev_b32 v39, 4, v5")
    a("v_add_u32 v39, s3, v39")
    a("s_and_b32 s3, s49, 1")
    a("s_lshl_b32 s75, s51, 1")
    a("s_add_u32 s3, s3, s75")
    a("s_lshl_b32 s3, s3, 2")
    a("s_add_u32 s3, s3, s18")
    a("s_lshl_b32 s3, s3, 14")
    a("s_lshl_b32 s75, s19, 7")
    a("s_add_u32 s3, s3, s75")
    a("v_lshlrev_b32 v9, 10, v7")
    a("v_lshl_add_u32 v9, v8, 7, v9")
    a("v_add_u32 v32, s3, v9")
    a("s_lshl_b32 s3, s50, 3")
    a("v_add_u32 v33, s3, v5")
    a("v_cmp_eq_u32 s[80:81], s49, v2")
    def late_setup():
        a(f"s_mul_i32 s3, s18, {4*WPS}")
        a(f"s_add_u32 s3, s3, {WP}")
        a(f"v_mul_u32_u24 v31, {2*WPS}, v8")
        a("v_lshl_add_u32 v31, v7, 1, v31")
        a("v_add_u32 v31, s3, v31")
        a("v_lshlrev_b32 v9, 4, v2")
        a("v_add_u32 v29, s3, v9")
        for i in range(4): a(f"v_mov_b32 v{48+i}, 0")
        for sx in range(2):
            a(f"v_lshlrev_b32 v8, 3, v4")
            a(f"v_sub_u32 v8, v8, v6")
            a(f"v_add_u32 v8, {32*sx+8}, v8      ; u+8")
            a("v_and_b32 v9, 1, v8")
            a("v_mul_u32_u24 v9, 94, v9")
            a("v_lshl_add_u32 v9, v8, 1, v9")
            a("v_cmp_gt_u32 vcc, 39, v8")
            a("s_nop 1")
            a("v_cndmask_b32 v9, 0, v9, vcc")
            a(f"v_add_u32 v{42+sx}, s3, v9")
        a("s_lshr_b32 s3, s18, 1")
        a("s_lshl_b32 s3, s3, 2")
        a("v_add_u32 v8, s3, v4")
        a("v_lshlrev_b32 v8, 1, v8")
        a("v_xor_b32 v8, v8, v6            ; c8")
        a("v_lshlrev_b32 v8, 4, v8")
        a("s_lshl_b32 s3, s18, 2")
        a("v_add_u32 v9, s3, v4")
        a("v_lshl_add_u32 v8, v9, 10, v8")
        a("s_lshl_b32 s3, s19, 7            ; cb*256")
        a("v_add_u32 v47, s3, v8")
        a("s_lshl_b32 s74, s18, 10         ; lw*1024")
        a(f"s_mul_i32 s3, s18, {8*HTS}")
        a(f"s_add_u32 s3, s3, {HT}")
        a("v_lshlrev_b32 v12, 5, v6")
        a("v_add_u32 v12, s3, v12")
        a("v_and_b32 v13, 1, v4")
        a("v_lshl_add_u32 v13, v13, 4, v12")
        a("v_add_u32 v13, 64, v13            ; s=1 addr")
        a("v_lshl_add_u32 v12, v4, 4, v12    ; s=0 addr")
        a("s_lshl_b32 s3, s50, 18")
        a("s_lshl_b32 s75, s49, 11")
        a("s_add_u32 s3, s3, s75")
        a("s_lshl_b32 s75, s18, 8")
        a("s_add_u32 s3, s3, s75")
        a("v_lshlrev_b32 v14, 16, v4")
        a("v_lshl_add_u32 v14, v6, 4, v14")
        a("v_add_u32 v14, s3, v14")
        a(f"v_mov_b32 v38, {CNT}")
        a("v_mov_b32 v45, 1")
    TW = 128
    def toep(rho):
        a(f"ds_write_b16 v31, v{34+rho} offset:16")
        a(f"ds_write_b16 v31, v{34+rho} offset:110")
        a(f"ds_write_b16_d16_hi v31, v{34+rho} offset:{WPS+16}")
        a(f"ds_write_b16_d16_hi v31, v{34+rho} offset:{WPS+110}")
        for c in range(4):
            lc = 4*rho + c; o = c * (WPS // 4)
            for sx in range(2):
                w = TW + 8*lc + 4*sx
                a(f"ds_read2_b32 v[{w}:{w+1}], v{42+sx} offset0:{o} offset1:{o+1}")
                a(f"ds_read2_b32 v[{w+2}:{w+3}], v{42+sx} offset0:{o+2} offset1:{o+3}")
            a("s_waitcnt lgkmcnt(10)")
    if DWAT == 0:
        for i, o in enumerate((0, 8, 64, 72)):
            vq.issue(f"buffer_load_dword v{34+i}, v30, s[32:35], 0 offen offset:{o}", ("dw",))
        a("s_mov_b64 exec, 0xff")
        vq.issue("buffer_load_dwordx4 v[120:123], v39, s[40:43], 0 offen sc1", ("snap",))
        a("s_mov_b64 exec, -1")
    issue(0, 12, 13)
    issue(1, 0, ND1)
    vq.wait(("D", 0)); stamp(1); a("s_barrier")
    issue(1, ND1, 13); issue(2, 0, 6)
    vq.wait(("D", 1)); a("s_barrier")
    issue(2, 6, 13); issue(3)
    def dwsnap():
        for i, o in enumerate((0, 8, 64, 72)):
            vq.issue(f"buffer_load_dword v{34+i}, v30, s[32:35], 0 offen offset:{o}", ("dw",))
        a("s_mov_b64 exec, 0xff")
        vq.issue("buffer_load_dwordx4 v[120:123], v39, s[40:43], 0 offen sc1", ("snap",))
        a("s_mov_b64 exec, -1")
    if DWAT == 1: dwsnap()
    for s in range(2, 8):
        vq.wait(("D", s))
        if s in (4, 5, 7): stamp({4: 2, 5: 3, 7: 4}[s])
        a("s_barrier")
        if s + 2 <= 7: issue(s + 2)
        if s == LSET: late_setup()
        if s == 5:
            a("s_mov_b64 exec, 0xffffffff")
            vq.issue("buffer_load_dword v44, v32, s[28:31], 0 offen", ("pf",))
            a("s_mov_b64 exec, -1")
            a("s_getreg_b32 s3, hwreg(HW_REG_XCC_ID)")
            a("s_and_b32 s3, s3, 15")
            a("s_lshl_b32 s3, s3, 8")
            a("s_add_u32 s3, s3, 1")
            a("v_add_u32 v124, s3, v122")
            a("s_mov_b64 exec, s[80:81]")
            vq.issue("buffer_store_dword v124, v39, s[40:43], 0 offen offset:8", ("hello",))
            a("s_mov_b64 exec, -1")
        if s == 6:
            a("s_mov_b32 exec_hi, 0xffff")
            a("ds_write_b128 v29, v[48:51]")
            a("s_mov_b64 exec, -1")
            toep(0)
    w2p(list(range(12, 16)) + list(range(0, 12)))
    toep(1)
    a("v_add_u32 v16, 1, v120")
    a("v_add_u32 v17, 1, v121")
    a("v_mov_b32 v18, 2")
    a(f"v_lshrrev_b32 v7, 1, v5")
    a(f"v_mul_u32_u24 v7, {HTS}, v7")
    a("v_and_b32 v8, 1, v5")
    a("v_lshl_add_u32 v7, v8, 3, v7")
    a("s_mov_b64 exec, 0xff")
    a(f"v_add_u32 v7, {MBX}, v7")
    a("ds_write_b64 v7, v[120:121]")
    a("s_mov_b64 exec, -1")
    a("s_waitcnt lgkmcnt(0)")
    a("s_setprio 2")
    CD = 48; CA = 80; CT = 112
    def flag(h):
        if h == 1:
            a("s_mov_b64 exec, 0xff")
            vq.issue("buffer_load_dword v125, v39, s[40:43], 0 offen offset:8 sc1", ("S", 1))
        a("s_mov_b64 exec, 1")
        vq.wait(("S", h))
        a(f"ds_add_rtn_u32 v46, v38, v45 offset:{4*h}")
        a("s_waitcnt lgkmcnt(0)")
        a("v_cmp_eq_u32 vcc, 3, v46")
        a("s_nop 4")
        a(f"s_cbranch_vccz L_noflag{h}")
        a("s_mov_b64 exec, s[80:81]")
        a(f"buffer_store_dword v{16+h}, v39, s[40:43], 0 offen offset:{4*h}")
        if h == 1:
            a("s_mov_b64 exec, 0xff")
            a("v_cmp_ne_u32 vcc, v124, v125")
            a("s_nop 4")
            a(f"s_cbranch_vccz L_noflag{h}")
            a("s_mov_b64 exec, s[80:81]")
            a("buffer_store_byte v18, v33, s[44:47], 0 offen sc1")
        a.label(f"L_noflag{h}")
        a("s_mov_b64 exec, -1")
        stamp(7 + 3*h)
    def conv_half(h):
        lq = LQ(a)
        CP = 64 if h == 0 else 48
        def cread(c):
            d = CD + (c % 4)*8
            off = (32*h + c) * HTS
            lq.issue(f"ds_read_b128 v[{d}:{d+3}], v12 offset:{off}", ("c", c))
            lq.issue(f"ds_read_b128 v[{d+4}:{d+7}], v13 offset:{off}", ("c", c))
        def mf(c):
            d = CD + (c % 4)*8; w = TW + 8*(8*h + c); ac = CA + 4*c
            lq.wait([("c", c)])
            a(f"v_mfma_f32_16x16x32_bf16 v[{ac}:{ac+3}], v[{d}:{d+3}], v[{w}:{w+3}], 0")
            a(f"v_mfma_f32_16x16x32_bf16 v[{ac}:{ac+3}], v[{d+4}:{d+7}], v[{w+4}:{w+7}], v[{ac}:{ac+3}]")
            if c + 4 < 8: cread(c + 4)
        for c in range(4): cread(c)
        for c in range(8): mf(c)
        for c in range(8):
            ac = CA + 4*c
            for o in sigmul_ops(ac, ac, ac, CT + (c % 2)*4): a(o)
        for r in range(4):
            for e in range(4):
                a(f"v_cvt_pk_bf16_f32 v{CP+4*r+e}, v{CA+8*e+r}, v{CA+8*e+4+r}")
            a(f"s_mov_b32 s3, {r*16384}")
            vq.issue(f"buffer_store_dwordx4 v[{CP+4*r}:{CP+4*r+3}], v14, s[40:43], s3 offen offset:{1024*h} sc1", ("S", h))
        stamp(6 + 3*h)
    a("s_barrier")
    stamp(5)
    conv_half(0)
    toep(2)
    flag(0)
    toep(3)
    a("s_waitcnt lgkmcnt(0)")
    a("s_barrier")
    stamp(8)
    conv_half(1)
    flag(1)
    a("s_cmp_lg_u32 s18, 0")
    a("s_cbranch_scc1 L_lnopoll")
    poll(39, 4, False, 121, 64, 33, "L_pollB")
    a.label("L_lnopoll")
    stamp(11)
    a("s_barrier")
    a("s_branch L_fin")

    a.label("L_compute")
    role[0] = "C"
    a("s_waitcnt lgkmcnt(0)")
    build_srds1(); build_srds2()
    for i in range(4): a(f"v_mov_b32 v{252+i}, 0")
    a(f"v_mov_b32 v15, {CNT}")
    a("ds_write_b128 v15, v[252:255]")
    if CPF == 2:
        a("s_getpc_b64 s[78:79]")
        a.label("L_pc2")
        a("s_sub_u32 s78, s78, L_pc2-L_start")
        a("s_subb_u32 s79, s79, 0")
        a("v_lshlrev_b32 v251, 7, v0")
        a("v_min_u32 v251, L_end-L_start, v251")
        a("global_load_dword v252, v251, s[78:79]")
    if codepf and CPF == 1:
        a("s_cmp_lg_u32 s48, 1")
        a("s_cbranch_scc1 L_nopf")
        a("s_getpc_b64 s[78:79]")
        a.label("L_pc")
        a("s_sub_u32 s78, s78, L_pc-L_start")
        a("s_subb_u32 s79, s79, 0")
        a("s_lshr_b32 s3, s2, 3")
        a("s_lshl_b32 s3, s3, 10")
        a("v_lshlrev_b32 v251, 7, v2")
        a("v_add_u32 v251, s3, v251")
        a("v_min_u32 v251, L_end-L_start, v251")
        a("s_mov_b64 exec, 0xff")
        a("global_load_dword v252, v251, s[78:79]")
        a("s_mov_b64 exec, -1")
        a.label("L_nopf")
    a("s_lshr_b32 s60, s48, 1          ; wr")
    a("s_and_b32 s61, s48, 1           ; wc")
    a("s_mul_i32 s3, s60, 144")
    a("v_add_u32 v7, s3, v6")
    a("v_lshrrev_b32 v8, 1, v6")
    a("v_xor_b32 v8, v8, v4")
    a("v_lshlrev_b32 v8, 4, v8")
    a("v_lshl_add_u32 v8, v7, 7, v8")
    a("v_xor_b32 v9, 64, v8")
    a("v_lshrrev_b32 v7, 2, v6            ; i>>2")
    a("v_and_b32 v10, 1, v4")
    a("v_lshl_add_u32 v10, v10, 2, v7     ; w")
    a("v_lshlrev_b32 v10, 5, v10")
    a("v_and_b32 v11, 3, v6")
    a("v_lshl_add_u32 v10, v11, 3, v10    ; + (i&3)*8")
    a("v_lshl_add_u32 v7, v4, 3, v7       ; 8g + (i>>2)")
    a("v_lshl_add_u32 v224, v7, 8, v10")
    for t in range(1, 8): a(f"v_xor_b32 v{224+t}, {32*t}, v224")
    a("s_lshl_b32 s3, s61, 5")
    a("v_xor_b32 v10, s3, v224             ; t = wc")
    a(f"v_add_u32 v10, {WB}, v10")
    a("v_xor_b32 v11, 64, v10             ; a1: t^2")
    a("v_xor_b32 v12, 128, v10            ; b0: t^4")
    a("v_xor_b32 v13, 192, v10            ; b1: t^6")
    a(f"v_mov_b32 v15, {CNT}")
    a("v_mov_b32 v5, 1")
    a("s_lshr_b32 s3, s18, 1")
    a("s_lshl_b32 s3, s3, 2")
    a("v_add_u32 v3, s3, v4")
    a("v_lshlrev_b32 v3, 1, v3")
    a("v_xor_b32 v3, v3, v6            ; c8")
    a("v_lshlrev_b32 v3, 4, v3")
    a("s_lshl_b32 s3, s18, 2")
    a("v_add_u32 v7, s3, v4")
    a("v_lshl_add_u32 v3, v7, 10, v3")
    a("s_lshl_b32 s3, s19, 7            ; cb*256")
    a("v_add_u32 v3, s3, v3")
    a("s_lshl_b32 s74, s18, 10")
    a("s_lshl_b32 s3, s61, 4")
    a("v_add_u32 v7, s3, v6")
    a(f"v_mul_u32_u24 v7, {HTS}, v7")
    a("v_lshl_add_u32 v7, v4, 3, v7")
    a("s_mul_i32 s3, s60, 288")
    a(f"s_add_u32 s3, s3, {HT}")
    a("v_add_u32 v14, s3, v7")
    a("s_and_b32 s60, s49, 1             ; hf")
    a("s_lshr_b32 s61, s49, 1            ; cb")
    a("s_lshl_b32 s3, s60, 2")
    a("s_add_u32 s3, s3, s48")
    a("s_lshl_b32 s59, s3, 15")
    a("s_lshl_b32 s75, s50, 18")
    a("s_add_u32 s3, s59, s75")
    a("v_lshlrev_b32 v232, 4, v2")
    a("v_add_u32 v232, s3, v232")
    a("v_add_u32 v233, 16384, v232")
    for j in range(8):
        a(f"s_add_u32 s3, s19, {j}")
        a("s_and_b32 s3, s3, 7")
        a(f"s_lshl_b32 s{62+j}, s3, 11")
    a(f"s_mul_i32 s3, s50, {GSTR}")
    a(f"s_add_u32 s3, s3, {FLAG_OFF}")
    a("v_and_b32 v7, 7, v2")
    a("v_lshlrev_b32 v234, 4, v7")
    a("v_add_u32 v234, s3, v234")
    a("s_lshl_b32 s3, s50, 3")
    a("v_add_u32 v248, s3, v7")
    a("v_lshrrev_b32 v249, 1, v7")
    a(f"v_mul_u32_u24 v249, {HTS}, v249")
    a("v_and_b32 v7, 1, v7")
    a("v_lshl_add_u32 v249, v7, 3, v249")
    a(f"v_add_u32 v249, {MBX}, v249")
    a("s_lshl_b32 s3, s48, 13")
    a(f"s_add_u32 s3, s3, {OST}")
    a("v_lshrrev_b32 v235, 1, v4")
    a("v_xor_b32 v235, v235, v6")
    a("v_lshlrev_b32 v235, 4, v235")
    a("v_and_b32 v7, 1, v4")
    a("v_lshl_add_u32 v235, v7, 3, v235")
    a("v_lshl_add_u32 v235, v6, 8, v235")
    a("v_add_u32 v235, s3, v235")
    for T_ in range(1, 8): a(f"v_xor_b32 v{235+T_}, {32*T_}, v235")
    a("v_xor_b32 v243, v6, v4")
    a("v_lshlrev_b32 v243, 4, v243")
    a("v_lshl_add_u32 v243, v4, 8, v243")
    a("v_add_u32 v243, s3, v243")
    for n in range(1, 4): a(f"v_xor_b32 v{243+n}, {64*n}, v243")
    a("s_lshl_b32 s75, s61, 8")
    a("s_add_u32 s3, s59, s75")
    a("v_lshlrev_b32 v247, 4, v6")
    a("v_lshl_add_u32 v247, v4, 10, v247")
    a("v_add_u32 v247, s3, v247")
    ACC = 16; AR = 160; NA = 8; BR = 192
    def acc(rt, c): b = ACC + (rt*4 + c)*4; return f"v[{b}:{b+3}]"
    def areg(n): b = AR + (n % NA)*4; return f"v[{b}:{b+3}]"
    def breg(kk, c, h=None):
        b = BR + (kk % 2)*16 + c*4
        if h is None: return f"v[{b}:{b+3}]"
        return f"v[{b+2*h}:{b+2*h+1}]"
    lq = LQ(a)
    NSTEP = 144
    def readA(n):
        s, r = divmod(n % NSTEP if n < NSTEP else n - 18, 18); ks, rt = divmod(r, 9)
        lq.issue(f"ds_read_b128 {areg(n)}, v{8+ks} offset:{rt*2048}", ("A", n))
    def readB(kk, c):
        ks = kk % 2
        for h in range(2):
            lq.issue(f"ds_read_b64_tr_b16 {breg(kk,c,h)}, v{10+c} offset:{ks*8192 + h*1024}", ("B", kk, c))
    def switch_slot(s):
        d = (slot_of(s) - slot_of(s-1)) * SLOT
        for r in range(8, 14):
            if d > 0: a(f"v_add_u32 v{r}, {d}, v{r}")
            else: a(f"v_subrev_u32 v{r}, {-d}, v{r}")
    PD = 6; BARP = 4
    stamp(0)
    a("s_waitcnt lgkmcnt(0)")
    a("s_barrier")
    stamp(1)
    for c in range(4): readB(0, c)
    for n in range(4): readA(n)
    nextA = 4
    for n in range(NSTEP):
        s, r = divmod(n, 18); ks, rt = divmod(r, 9)
        kk = s*2 + ks
        if r == 18 - BARP and s < 7:
            lq.waitall()
            a("s_barrier")
            switch_slot(s + 1)
            if probe == ("C", 100 + s + 1): a("s_memrealtime s[84:85]")
            encst(100 + s + 1)
            if s + 1 in (4, 5, 7) and not G2ST: stamp({4: 2, 5: 3, 7: 4}[s+1])
        lim_stage = s + 1 if r >= 18 - BARP else s
        def canA(m): return m < NSTEP and m // 18 <= lim_stage and m < n + NA
        pend = []
        if ks == 0 and 2 <= rt <= 5: pend.append(("B", kk+1, rt-2))
        if ks == 1 and s < 7 and r >= 18 - BARP and r < 18 - BARP + 2:
            o = (r - (18 - BARP)) * 2
            pend.append(("B", kk+1, o)); pend.append(("B", kk+1, o+1))
        cnt = 0
        while canA(nextA) and nextA <= n + PD + (1 if (r >= 9 or s == 7) else 0) and cnt < 2:
            pend.append(("A", nextA)); nextA += 1; cnt += 1
        need = [("A", n)] + ([("B", kk, c) for c in range(4)] if rt == 0 else [])
        lq.wait(need)
        cs = (0, 2) if (DEFER and s == 7) else (0, 1, 2, 3)
        for ci, c in enumerate(cs):
            cin = "0" if kk == 0 else acc(rt, c)
            a(f"v_mfma_f32_16x16x32_bf16 {acc(rt,c)}, {areg(n)}, {breg(kk,c)}, {cin}")
            rem = len(cs) - ci
            k = (len(pend) + rem - 1) // rem if pend else 0
            for _ in range(k):
                p = pend.pop(0)
                if p[0] == "A": readA(p[1])
                else: readB(p[1], p[2])
        if r == 18 - BARP - 1:
            assert nextA >= min(NSTEP, (s+1)*18), (n, nextA)
    stamp(5)
    def glu(j):
        def wr(rt):
            av = ACC + (rt*4 + j)*4
            lq.issue(f"ds_write_b64 v14, v[{av}:{av+1}] offset:{j*32*HTS + rt*32}", ("w", j, rt))
        for rt in range(9):
            av = ACC + (rt*4 + j)*4; bv = ACC + (rt*4 + 2 + j)*4
            if j == 1 and rt == W2AT: w2p(range(16, 30), 3)
            for o in sigmul_ops(bv, bv, av, bv): a(o)
            a(f"v_cvt_pk_bf16_f32 v{av}, v{bv}, v{bv+1}")
            a(f"v_cvt_pk_bf16_f32 v{av+1}, v{bv+2}, v{bv+3}")
            if not LATEW[j]: wr(rt)
        if LATEW[j]:
            for rt in range(9): wr(rt)
        lq.waitall()
    a("s_nop 3")
    glu(0)
    stamp(6)
    a("s_barrier")
    if DEFER:
        nextA = NSTEP + 6
        for n in range(NSTEP, NSTEP + 18):
            ks, rt = divmod(n - NSTEP, 9); kk = 14 + ks
            lq.wait([("A", n)])
            for c in (1, 3):
                a(f"v_mfma_f32_16x16x32_bf16 {acc(rt,c)}, {areg(n)}, {breg(kk,c)}, {acc(rt,c)}")
                if nextA < NSTEP + 18 and nextA < n + NA: readA(nextA); nextA += 1
            if n == NSTEP + 14:
                lq.waitall()
                a("s_mov_b64 exec, 1")
                lq.issue("ds_add_u32 v15, v5 offset:12", ("e0",))
                a("s_mov_b64 exec, -1")
        a("s_nop 3")
    assert not DEFER
    vq = VQ(a)
    stamp(7)
    lq.issue("ds_read_b64 v[250:251], v249", ("mb",))
    glu(1)
    stamp(8)
    a("s_barrier")
    stamp(9)
    w2p([30, 31], 3)
    a(f"s_setprio {PR[1]}")
    a("s_cmp_lg_u32 s48, 0")
    a("s_cbranch_scc1 L_waitgo")
    a(f"s_setprio {PR[0]}")
    poll(234, 0, True, 250, 28, 248, "L_pollA")
    a("ds_write_b32 v15, v5 offset:8")
    a("s_branch L_go")
    a.label("L_waitgo")
    spin_lds(15, 8, 7, 1, "L_wg", sleep=1)
    a.label("L_go")
    a("s_waitcnt lgkmcnt(0)")
    stamp(10)
    A2 = 96; NA2 = 8; B2 = 160; NB2 = 8; AC2 = 32
    vq = VQ(a)
    def loadA(P):
        h, j = divmod(P, 8)
        for r2 in range(2):
            b = A2 + (P % NA2)*8 + 4*r2
            vq.issue(f"buffer_load_dwordx4 v[{b}:{b+3}], v{232+r2}, s[40:43], s{62+j} offen offset:{h*1024} sc1", P)
    lq = LQ(a)
    def readB2(f):
        P, T_ = divmod(f, 8)
        ad = w2addr(P)
        if P == 1: a(f"v_add_u32 v{16+T_}, 65536, v{224+T_}")
        reg = 224 + T_ if ad < 65536 else 16 + T_
        ad %= 65536
        b = B2 + (f % NB2)*4
        for h in range(2):
            lq.issue(f"ds_read_b64_tr_b16 v[{b+2*h}:{b+2*h+1}], v{reg} offset:{ad + h*1024}", ("B", f))
    for P in range(6): loadA(P)
    nextL = 6
    BD = 6
    for f in range(BD): readB2(f)
    a("s_setprio 0")
    for P in range(16):
        if P == X3P:
            a("s_barrier")
            stamp(12)
        vq.wait(P)
        if P == 0: stamp(11)
        if G2ST and P in (2, 4, 5, 8, 9, 10, 12, 14): stamp({2:0, 4:1, 5:2, 8:3, 9:4, 10:5, 12:6, 14:7}[P])
        for T_ in range(8):
            f = P*8 + T_
            lq.wait([("B", f)])
            b = B2 + (f % NB2)*4
            for r2 in range(2):
                ab = A2 + (P % NA2)*8 + 4*r2
                ac = AC2 + (r2*8 + T_)*4
                cin = "0" if P == 0 else f"v[{ac}:{ac+3}]"
                a(f"v_mfma_f32_16x16x32_bf16 v[{ac}:{ac+3}], v[{b}:{b+3}], v[{ab}:{ab+3}], {cin}")
                if r2 == 0 and f + BD < 128: readB2(f + BD)
            if T_ % 2 == 0 and nextL < 16 and nextL < P + NA2 and (nextL < 8 or P >= X3P):
                loadA(nextL); nextL += 1
    stamp(13)
    a("s_nop 3")
    PK = 96; RB = 128
    lq = LQ(a)
    def ostore(n):
        if n: a(f"v_add_u32 v247, 4096, v247")
        lq.wait([("r", n)])
        a(f"buffer_store_dwordx4 v[{RB+4*n}:{RB+4*n+3}], v247, s[36:39], 0 offen {outflag}")
    for r2 in range(2):
        for T_ in range(8):
            ac = AC2 + (r2*8 + T_)*4; p = PK + (r2*8 + T_)*2
            a(f"v_cvt_pk_bf16_f32 v{p}, v{ac}, v{ac+1}")
            a(f"v_cvt_pk_bf16_f32 v{p+1}, v{ac+2}, v{ac+3}")
            if r2 == 1 and T_ >= 3 and T_ < 7: ostore(T_ - 3)
            lq.issue(f"ds_write_b64 v{235+T_}, v[{p}:{p+1}] offset:{r2*4096}", ("w", r2, T_))
        for n in range(4*r2, 4*r2+4):
            lq.issue(f"ds_read_b128 v[{RB+4*n}:{RB+4*n+3}], v{243+n%4} offset:{n*1024}", ("r", n))
    for n in range(4, 8): ostore(n)
    if probe:
        a("s_waitcnt vmcnt(0) lgkmcnt(0)")
        if enc and enc[0] == "blk":
            a("s_mov_b32 s92, 0")
            a.label("L_blk")
            a("s_memtime s[94:95]")
            a("s_waitcnt lgkmcnt(0)")
            for i in range(enc[2]): a(f"v_pk_mul_f32 v[{32+2*(i%16)}:{33+2*(i%16)}], v[{64+2*(i%16)}:{65+2*(i%16)}], s[76:77]")
            a("s_memtime s[96:97]")
            a("s_waitcnt lgkmcnt(0)")
            a(f"s_cmp_lg_u32 s92, {enc[1]}")
            a("s_cbranch_scc1 L_blk2")
            a("s_sub_u32 s3, s96, s94")
            a("s_lshr_b32 s3, s3, 2")
            a("s_add_u32 s84, s84, s3")
            a.label("L_blk2")
            a("s_add_u32 s92, s92, 1")
            a("s_cmp_lt_u32 s92, 2")
            a("s_cbranch_scc1 L_blk")
        elif enc:
            a("s_sub_u32 s3, s90, s88")
            if enc[0] == "cyc": a("s_lshr_b32 s3, s3, 3")
            else: a("s_lshl_b32 s3, s3, 1")
            a("s_add_u32 s84, s84, s3")
        a.label("L_spin")
        a("s_memrealtime s[86:87]")
        a("s_waitcnt lgkmcnt(0)")
        a("s_sub_u32 s3, s86, s84")
        a("s_cmp_lt_i32 s3, 3000")
        a("s_cbranch_scc1 L_spin")
    a.label("L_fin")
    if stamps:
        a("s_waitcnt vmcnt(0)")
        a("s_memtime s[20:21]")
        a("s_memrealtime s[22:23]")
        a("s_waitcnt lgkmcnt(0)")
        a("s_cmp_lg_u32 s18, 0")
        a("s_cbranch_scc1 L_end")
        a("s_lshl_b32 s3, s2, 8")
        a("s_lshl_b32 s24, s48, 5")
        a("s_add_u32 s3, s3, s24")
        a(f"s_add_u32 s3, s3, {STAMP_OFF}")
        a("v_mov_b32 v25, s3")
        a("s_mov_b64 exec, 1")
        regs = [84, 22, 20] + SREGS
        for i, r in enumerate(regs):
            if i >= 2: a(f"s_sub_u32 s{r}, s{r}, s82")
            a(f"v_mov_b32 v20, s{r}")
            a(f"buffer_store_dword v20, v25, s[40:43], 0 offen offset:{4*i}")
    a.label("L_end")
    a("s_endpgm")
    return wrap_single(a.text(), 256, 512, 163840)

if __name__ == "__main__":
    open("k8.s", "w").write(gen(False))
    open("k8_st.s", "w").write(gen(True))
    P = ("C", 99)
    open("k8_r0.s", "w").write(gen(False, probe=P))
    open("k8_s1.s", "w").write(gen(False, probe=P, enc=("blk", 0, 512)))
    open("k8_s2.s", "w").write(gen(False, probe=P, enc=("blk", 1, 512)))
    open("k8_s3.s", "w").write(gen(False, probe=P, enc=("blk", 0, 512), codepf=False))
```

```python
import sys
from asmlib import *

SLOT = 53248
WB = 36864
HT = 125952
HTS = 592
WPS = 192
WP = 122880
MBX = HT + 59*HTS + 576
CNT = HT + 63*HTS + 576
GSTR = 4352
OST = 131072
FLAG_OFF = 0x1000000
STAMP_OFF = 0x4000000
SREGS = [86,88,90,92,94,96,98,100,4,6,8,10,12,14,16]

def slot_of(s): return s % 3
def w2addr(P):
    if P < 6: return P*8192
    if P < 8: return 106496 + (P-6)*8192
    if P < 15: return 49152 + (P-8)*8192
    return 122880

class LQ:
    def __init__(self, a): self.a = a; self.q = []
    def issue(self, instr, tag):
        self.a(instr); self.q.append(tag)
        assert len(self.q) <= 15, "too many outstanding lds ops"
    def wait(self, tags):
        idx = -1
        for i, t in enumerate(self.q):
            if t in tags: idx = i
        if idx < 0: return
        n = len(self.q) - idx - 1
        self.a(f"s_waitcnt lgkmcnt({n})")
        self.q = self.q[idx+1:]
    def waitall(self):
        self.a("s_waitcnt lgkmcnt(0)"); self.q = []

class VQ:
    def __init__(self, a): self.a = a; self.q = []
    def issue(self, instr, tag): self.a(instr); self.q.append(tag); assert len(self.q) <= 63
    def wait(self, tag):
        idx = max(i for i, t in enumerate(self.q) if t == tag)
        self.a(f"s_waitcnt vmcnt({len(self.q)-idx-1})")
        del self.q[:idx+1]
    def waitall(self): self.a("s_waitcnt vmcnt(0)"); self.q = []

def sigmul_ops(dst, bv, av, t):
    o = []
    o.append(f"v_pk_mul_f32 v[{t}:{t+1}], v[{bv}:{bv+1}], s[76:77]")
    o.append(f"v_pk_mul_f32 v[{t+2}:{t+3}], v[{bv+2}:{bv+3}], s[76:77]")
    for e in range(4): o.append(f"v_exp_f32 v{t+e}, v{t+e}")
    o.append(f"v_pk_add_f32 v[{t}:{t+1}], v[{t}:{t+1}], 1.0 op_sel_hi:[1,0]")
    o.append(f"v_pk_add_f32 v[{t+2}:{t+3}], v[{t+2}:{t+3}], 1.0 op_sel_hi:[1,0]")
    for e in range(4): o.append(f"v_rcp_f32 v{t+e}, v{t+e}")
    o.append(f"v_pk_mul_f32 v[{dst}:{dst+1}], v[{t}:{t+1}], v[{av}:{av+1}]")
    o.append(f"v_pk_mul_f32 v[{dst+2}:{dst+3}], v[{t+2}:{t+3}], v[{av+2}:{av+3}]")
    return o

def gen(stamps=False, codepf=True, X3P=6, W2AT=0, G2ST=False, LSET=6, DWAT=1, CPF=1, probe=None, enc=None, ND1=6, WF='', LATEW=(0,1), PR=(3,3), NF=24, outflag="nt", DEFER=0, NPRE=7, cmap=0, blkx=False, exp=()):
    a = Asm()
    role = ["L"]
    def encst(i):
        if enc and role[0] == "C" and enc[0] != "blk":
            ins = "s_memtime" if enc[0] == "cyc" else "s_memrealtime"
            if i == enc[1]: a(f"{ins} s[88:89]")
            if i == enc[2]: a(f"{ins} s[90:91]")
    def stamp(i):
        if probe == (role[0], i): a("s_memrealtime s[84:85]")
        encst(i)
        if stamps:
            r = SREGS[i]; a(f"s_memtime s[{r}:{r+1}]")
    def spin_lds(addr, off, tmp, val, lab, sleep=1):
        a("s_mov_b32 s75, 0")
        a.label(lab)
        a(f"ds_read_b32 v{tmp}, v{addr} offset:{off}")
        a("s_add_u32 s75, s75, 1")
        a("s_waitcnt lgkmcnt(0)")
        a(f"v_cmp_ne_u32 vcc, {val}, v{tmp}")
        a("s_cmp_gt_u32 s75, 0x800000")
        a(f"s_cbranch_scc1 {lab}_d")
        a("s_nop 2")
        a(f"s_cbranch_vccz {lab}_d")
        a(f"s_sleep {sleep}")
        a(f"s_branch {lab}")
        a.label(lab + "_d")
    def poll(addr, off, wide, snap, tmp, saddr, lab):
        def fload():
            if wide: a(f"buffer_load_dwordx2 v[{tmp}:{tmp+1}], v{addr}, s[40:43], 0 offen offset:{off} sc1")
            else: a(f"buffer_load_dword v{tmp}, v{addr}, s[40:43], 0 offen offset:{off} sc1")
        def fcmp():
            if wide: a(f"v_cmp_eq_u64 vcc, v[{snap}:{snap+1}], v[{tmp}:{tmp+1}]")
            else: a(f"v_cmp_eq_u32 vcc, v{snap}, v{tmp}")
        a("s_mov_b64 exec, 0xff")
        a("s_mov_b32 s3, 0")
        a.label(lab)
        fload()
        a("s_add_u32 s3, s3, 1")
        a("s_waitcnt vmcnt(0)")
        fcmp()
        a("s_nop 4")
        a(f"s_cbranch_vccz {lab}_done")
        a(f"s_cmp_lt_u32 s3, {NF}")
        a(f"s_cbranch_scc1 {lab}")
        a(f"buffer_load_ubyte v{tmp+2}, v{saddr}, s[44:47], 0 offen sc1")
        a("s_waitcnt vmcnt(0)")
        a(f"v_cmp_ne_u32 s[72:73], 2, v{tmp+2}")
        a("s_nop 4")
        a("s_and_b64 s[72:73], s[72:73], vcc")
        a(f"s_cbranch_scc0 {lab}_done")
        a("s_sleep 8")
        a("s_cmp_lt_u32 s3, 0x80000")
        a(f"s_cbranch_scc1 {lab}")
        a.label(lab + "_done")
        a("s_mov_b64 exec, -1")
    a.label("L_start")
    if probe: a("s_memrealtime s[84:85]")
    if stamps:
        a("s_memtime s[82:83]")
        a("s_memrealtime s[84:85]")
    a("""
    s_cmp_ge_u32 s2, 256
    s_cbranch_scc1 L_end
    s_load_dwordx8 s[4:11], s[0:1], 0     ; x, w1, dw, w2
    s_load_dwordx4 s[12:15], s[0:1], 32
    s_load_dwordx2 s[16:17], s[0:1], 48   ; ws
    v_lshrrev_b32 v1, 6, v0
    v_and_b32 v2, 63, v0                  ; lane
    s_and_b32 s54, s2, 7                  ; xcd
    v_readfirstlane_b32 s48, v1
    s_lshr_b32 s51, s2, 3
    s_and_b32 s49, s51, 7                 ; ct
    s_lshr_b32 s51, s51, 3                ; rt&3
    s_lshl_b32 s50, s54, 2
    s_add_u32 s50, s50, s51               ; rt
    s_lshr_b32 s55, s50, 4                ; batch
    s_and_b32 s56, s50, 15
    s_mul_i32 s56, s56, 250               ; row0
    s_sub_u32 s52, s56, 15
    s_mul_i32 s57, s55, 4096000
    s_add_u32 s53, s49, s50
    s_and_b32 s53, s53, 3                 ; rot r
    s_mov_b32 s22, 4096000
    s_mov_b32 s23, 0x20000
    s_mov_b32 s26, 1048576
    s_mov_b32 s27, 0x20000
    s_lshl_b32 s58, s49, 7                ; ct*128
    s_and_b32 s18, s48, 3                 ; w & 3
    v_lshrrev_b32 v4, 4, v2               ; l>>4  (q / g)
    v_and_b32 v6, 15, v2                  ; l&15
    s_cmp_lt_u32 s48, 4
    s_cbranch_scc1 L_compute
    """)
    def build_srds1():
        a("""
        s_add_u32 s20, s4, s57
        s_addc_u32 s21, s5, 0
        s_mov_b32 s24, s6
        s_mov_b32 s25, s7
        """)
    def build_srds2():
        a("""
        s_mov_b32 s28, s10
        s_mov_b32 s29, s11
        s_mov_b32 s30, 524288
        s_mov_b32 s31, 0x20000
        s_mov_b32 s32, s8
        s_mov_b32 s33, s9
        s_mov_b32 s34, 31744
        s_mov_b32 s35, 0x20000
        s_lshl_b32 s59, s56, 10
        s_add_u32 s59, s59, s57
        s_add_u32 s36, s12, s59
        s_addc_u32 s37, s13, 0
        s_mov_b32 s38, 256000
        s_mov_b32 s39, 0x20000
        s_mov_b32 s40, s16
        s_mov_b32 s41, s17
        s_mov_b32 s42, 0x8000000
        s_mov_b32 s43, 0x20000
        s_mov_b32 s44, s14
        s_mov_b32 s45, s15
        s_mov_b32 s46, 256
        s_mov_b32 s47, 0x20000
        s_mov_b32 s76, 0xbfb8aa3b
        s_mov_b32 s77, 0xbfb8aa3b
        s_and_b32 s19, s49, 6           ; 2*cb
        """)
    a("v_lshlrev_b32 v7, 1, v4")
    a("v_xor_b32 v7, v7, v6            ; c8 for j=0,1")
    a("v_lshrrev_b32 v8, 3, v7")
    a("v_and_b32 v9, 7, v7")
    a("v_lshlrev_b32 v9, 4, v9")
    a("v_lshl_add_u32 v9, v8, 10, v9")
    a("s_lshl_b32 s19, s18, 4")
    a("v_add_u32 v8, s19, v4           ; kr j=0")
    a("v_lshl_add_u32 v9, v8, 11, v9")
    a("v_add_u32 v25, s58, v9")
    a("v_add_u32 v26, 8192, v25")
    a("v_xor_b32 v27, 1024, v25")
    a("v_add_u32 v27, 16384, v27")
    a("v_add_u32 v28, 8192, v27")
    a("s_lshl_b32 s78, s18, 12")
    a(f"s_add_u32 s78, s78, {WB}")
    a("v_lshrrev_b32 v3, 3, v2   ; l>>3")
    a("v_and_b32 v5, 7, v2")
    a("v_add_u32 v10, s52, v3")
    a("s_lshl_b32 s3, s18, 2")
    a("v_add_u32 v11, s3, v4")
    a("v_and_b32 v11, 7, v11           ; swz")
    a("v_xor_b32 v11, v11, v5")
    a("v_lshlrev_b32 v11, 4, v11")
    a("v_lshl_add_u32 v10, v10, 10, v11")
    a("s_lshr_b32 s3, s49, 2           ; hb")
    a("s_mul_i32 s3, s3, 18")
    a("s_add_u32 s79, s3, s18           ; p_0")
    vq = VQ(a)
    if blkx: a("s_and_b32 s73, s54, 1")
    def setup(s):
        a(f"s_add_u32 s3, s53, {s}")
        a(f"s_and_b32 s3, s3, 3")
        blk = s >> 2
        if cmap == 0:
            if blk: a("s_add_u32 s3, s3, 4")
            sh = 2
        elif cmap == 1:
            a("s_lshl_b32 s3, s3, 1")
            if blk: a("s_add_u32 s3, s3, 1")
            sh = 0
        elif cmap == 2:
            a("s_and_b32 s75, s3, 2")
            a("s_add_u32 s3, s3, s75")
            if blk: a("s_add_u32 s3, s3, 2")
            sh = 1
        if blkx:
            a(f"s_lshl_b32 s75, s73, {sh}")
            a("s_xor_b32 s3, s3, s75")
        a(f"s_lshl_b32 s{69+s%2}, s3, 17")
        a(f"s_lshl_b32 s{71+s%2}, s3, 7")
    def xaddr(j):
        if j: a(f"s_add_u32 s79, s79, 4")
        if j >= 4:
            a("s_sub_u32 s75, s79, 36")
            a("s_cmp_ge_u32 s79, 36")
            a("s_cselect_b32 s79, s75, s79")
        a(f"s_lshl_b32 s{60+j}, s79, 10")
        a(f"s_lshl_b32 s75, s79, 13")
        a(f"v_add_u32 v{16+j}, s75, v10")
        a(f"v_min_u32 v{16+j}, 0x80000000, v{16+j}")
    def issue(s, lo=0, hi=13, first=False):
        if lo == 0 and hi > 0 and not first: setup(s)
        base = slot_of(s) * SLOT
        for k in range(lo, hi):
            if k < 4:
                a(f"s_add_u32 m0, s78, {base + k*1024}")
                a("s_nop 0")
                if not ("now0" in exp and s == 0): vq.issue(f"buffer_load_dwordx4 v{25+k}, s[24:27], s{69+s%2} offen {WF} lds", ("D", s))
            else:
                j = k - 4
                if first: xaddr(j)
                a(f"s_add_u32 m0, s{60+j}, {base}")
                a("s_nop 0")
                if not (("nox0" in exp and s == 0) or ("halfx0" in exp and s == 0 and j >= 5)): vq.issue(f"buffer_load_dwordx4 v{16+j}, s[20:23], s{71+s%2} offen nt lds", ("D", s))
    def w2p(PGs, vreg=47):
        for PG in PGs:
            P, sub = divmod(PG, 2)
            a(f"s_add_u32 m0, s74, {w2addr(P) + sub*4096}")
            a(f"s_add_u32 s75, s19, {P & 7}")
            a("s_and_b32 s75, s75, 7")
            a("s_lshl_b32 s75, s75, 16")
            a(f"s_add_u32 s75, s75, {sub*16384 + (P >> 3)*32768}")
            vq.issue(f"buffer_load_dwordx4 v{vreg}, s[28:31], s75 offen lds", ("W2",))
    setup(0)
    a("s_waitcnt lgkmcnt(0)")
    build_srds1()
    stamp(0)
    issue(0, 0, 12, first=True)
    xaddr(8)
    build_srds2()
    a("v_lshrrev_b32 v7, 1, v2")
    a("v_and_b32 v8, 1, v2")
    a("v_lshlrev_b32 v9, 10, v7")
    a("v_lshl_add_u32 v9, v8, 2, v9")
    a("s_lshl_b32 s3, s18, 4")
    a("s_add_u32 s3, s3, s58")
    a("v_add_u32 v30, s3, v9")
    a(f"s_mul_i32 s3, s50, {GSTR}")
    a(f"s_add_u32 s3, s3, {FLAG_OFF}")
    a("v_lshlrev_b32 v39, 4, v5")
    a("v_add_u32 v39, s3, v39")
    a("s_and_b32 s3, s49, 1")
    a("s_lshl_b32 s75, s51, 1")
    a("s_add_u32 s3, s3, s75")
    a("s_lshl_b32 s3, s3, 2")
    a("s_add_u32 s3, s3, s18")
    a("s_lshl_b32 s3, s3, 14")
    a("s_lshl_b32 s75, s19, 7")
    a("s_add_u32 s3, s3, s75")
    a("v_lshlrev_b32 v9, 10, v7")
    a("v_lshl_add_u32 v9, v8, 7, v9")
    a("v_add_u32 v32, s3, v9")
    a("s_lshl_b32 s3, s50, 3")
    a("v_add_u32 v33, s3, v5")
    a("v_cmp_eq_u32 s[80:81], s49, v2")
    def late_setup():
        a(f"s_mul_i32 s3, s18, {4*WPS}")
        a(f"s_add_u32 s3, s3, {WP}")
        a(f"v_mul_u32_u24 v31, {2*WPS}, v8")
        a("v_lshl_add_u32 v31, v7, 1, v31")
        a("v_add_u32 v31, s3, v31")
        a("v_lshlrev_b32 v9, 4, v2")
        a("v_add_u32 v29, s3, v9")
        for i in range(4): a(f"v_mov_b32 v{48+i}, 0")
        for sx in range(2):
            a(f"v_lshlrev_b32 v8, 3, v4")
            a(f"v_sub_u32 v8, v8, v6")
            a(f"v_add_u32 v8, {32*sx+8}, v8      ; u+8")
            a("v_and_b32 v9, 1, v8")
            a("v_mul_u32_u24 v9, 94, v9")
            a("v_lshl_add_u32 v9, v8, 1, v9")
            a("v_cmp_gt_u32 vcc, 39, v8")
            a("s_nop 1")
            a("v_cndmask_b32 v9, 0, v9, vcc")
            a(f"v_add_u32 v{42+sx}, s3, v9")
        a("s_lshr_b32 s3, s18, 1")
        a("s_lshl_b32 s3, s3, 2")
        a("v_add_u32 v8, s3, v4")
        a("v_lshlrev_b32 v8, 1, v8")
        a("v_xor_b32 v8, v8, v6            ; c8")
        a("v_lshlrev_b32 v8, 4, v8")
        a("s_lshl_b32 s3, s18, 2")
        a("v_add_u32 v9, s3, v4")
        a("v_lshl_add_u32 v8, v9, 10, v8")
        a("s_lshl_b32 s3, s19, 7            ; cb*256")
        a("v_add_u32 v47, s3, v8")
        a("s_lshl_b32 s74, s18, 10         ; lw*1024")
        a(f"s_mul_i32 s3, s18, {8*HTS}")
        a(f"s_add_u32 s3, s3, {HT}")
        a("v_lshlrev_b32 v12, 5, v6")
        a("v_add_u32 v12, s3, v12")
        a("v_and_b32 v13, 1, v4")
        a("v_lshl_add_u32 v13, v13, 4, v12")
        a("v_add_u32 v13, 64, v13            ; s=1 addr")
        a("v_lshl_add_u32 v12, v4, 4, v12    ; s=0 addr")
        a("s_lshl_b32 s3, s50, 18")
        a("s_lshl_b32 s75, s49, 11")
        a("s_add_u32 s3, s3, s75")
        a("s_lshl_b32 s75, s18, 8")
        a("s_add_u32 s3, s3, s75")
        a("v_lshlrev_b32 v14, 16, v4")
        a("v_lshl_add_u32 v14, v6, 4, v14")
        a("v_add_u32 v14, s3, v14")
        a(f"v_mov_b32 v38, {CNT}")
        a("v_mov_b32 v45, 1")
    TW = 128
    def toep(rho):
        a(f"ds_write_b16 v31, v{34+rho} offset:16")
        a(f"ds_write_b16 v31, v{34+rho} offset:110")
        a(f"ds_write_b16_d16_hi v31, v{34+rho} offset:{WPS+16}")
        a(f"ds_write_b16_d16_hi v31, v{34+rho} offset:{WPS+110}")
        for c in range(4):
            lc = 4*rho + c; o = c * (WPS // 4)
            for sx in range(2):
                w = TW + 8*lc + 4*sx
                a(f"ds_read2_b32 v[{w}:{w+1}], v{42+sx} offset0:{o} offset1:{o+1}")
                a(f"ds_read2_b32 v[{w+2}:{w+3}], v{42+sx} offset0:{o+2} offset1:{o+3}")
            a("s_waitcnt lgkmcnt(10)")
    if DWAT == 0:
        for i, o in enumerate((0, 8, 64, 72)):
            vq.issue(f"buffer_load_dword v{34+i}, v30, s[32:35], 0 offen offset:{o}", ("dw",))
        a("s_mov_b64 exec, 0xff")
        vq.issue("buffer_load_dwordx4 v[120:123], v39, s[40:43], 0 offen sc1", ("snap",))
        a("s_mov_b64 exec, -1")
    issue(0, 12, 13)
    issue(1, 0, ND1)
    vq.wait(("D", 0)); stamp(1); a("s_barrier")
    issue(1, ND1, 13); issue(2, 0, 6)
    vq.wait(("D", 1)); a("s_barrier")
    issue(2, 6, 13); issue(3)
    def dwsnap():
        for i, o in enumerate((0, 8, 64, 72)):
            vq.issue(f"buffer_load_dword v{34+i}, v30, s[32:35], 0 offen offset:{o}", ("dw",))
        a("s_mov_b64 exec, 0xff")
        vq.issue("buffer_load_dwordx4 v[120:123], v39, s[40:43], 0 offen sc1", ("snap",))
        a("s_mov_b64 exec, -1")
    if DWAT == 1: dwsnap()
    for s in range(2, 8):
        vq.wait(("D", s))
        if s in (4, 5, 7): stamp({4: 2, 5: 3, 7: 4}[s])
        a("s_barrier")
        if s + 2 <= 7: issue(s + 2)
        if s == LSET: late_setup()
        if s == 5:
            a("s_mov_b64 exec, 0xffffffff")
            vq.issue("buffer_load_dword v44, v32, s[28:31], 0 offen", ("pf",))
            a("s_mov_b64 exec, -1")
            a("s_getreg_b32 s3, hwreg(HW_REG_XCC_ID)")
            a("s_and_b32 s3, s3, 15")
            a("s_lshl_b32 s3, s3, 8")
            a("s_add_u32 s3, s3, 1")
            a("v_add_u32 v124, s3, v122")
            a("s_mov_b64 exec, s[80:81]")
            vq.issue("buffer_store_dword v124, v39, s[40:43], 0 offen offset:8", ("hello",))
            a("s_mov_b64 exec, -1")
        if s == 6:
            a("s_mov_b32 exec_hi, 0xffff")
            a("ds_write_b128 v29, v[48:51]")
            a("s_mov_b64 exec, -1")
            toep(0)
    w2p(list(range(12, 16)) + list(range(0, 12)))
    toep(1)
    a("v_add_u32 v16, 1, v120")
    a("v_add_u32 v17, 1, v121")
    a("v_mov_b32 v18, 2")
    a(f"v_lshrrev_b32 v7, 1, v5")
    a(f"v_mul_u32_u24 v7, {HTS}, v7")
    a("v_and_b32 v8, 1, v5")
    a("v_lshl_add_u32 v7, v8, 3, v7")
    a("s_mov_b64 exec, 0xff")
    a(f"v_add_u32 v7, {MBX}, v7")
    a("ds_write_b64 v7, v[120:121]")
    a("s_mov_b64 exec, -1")
    a("s_waitcnt lgkmcnt(0)")
    a("s_setprio 2")
    CD = 48; CA = 80; CT = 112
    def flag(h):
        if h == 1:
            a("s_mov_b64 exec, 0xff")
            vq.issue("buffer_load_dword v125, v39, s[40:43], 0 offen offset:8 sc1", ("S", 1))
        a("s_mov_b64 exec, 1")
        vq.wait(("S", h))
        a(f"ds_add_rtn_u32 v46, v38, v45 offset:{4*h}")
        a("s_waitcnt lgkmcnt(0)")
        a("v_cmp_eq_u32 vcc, 3, v46")
        a("s_nop 4")
        a(f"s_cbranch_vccz L_noflag{h}")
        a("s_mov_b64 exec, s[80:81]")
        a(f"buffer_store_dword v{16+h}, v39, s[40:43], 0 offen offset:{4*h}")
        if h == 1:
            a("s_mov_b64 exec, 0xff")
            a("v_cmp_ne_u32 vcc, v124, v125")
            a("s_nop 4")
            a(f"s_cbranch_vccz L_noflag{h}")
            a("s_mov_b64 exec, s[80:81]")
            a("buffer_store_byte v18, v33, s[44:47], 0 offen sc1")
        a.label(f"L_noflag{h}")
        a("s_mov_b64 exec, -1")
        stamp(7 + 3*h)
    def conv_half(h):
        lq = LQ(a)
        CP = 64 if h == 0 else 48
        def cread(c):
            d = CD + (c % 4)*8
            off = (32*h + c) * HTS
            lq.issue(f"ds_read_b128 v[{d}:{d+3}], v12 offset:{off}", ("c", c))
            lq.issue(f"ds_read_b128 v[{d+4}:{d+7}], v13 offset:{off}", ("c", c))
        def mf(c):
            d = CD + (c % 4)*8; w = TW + 8*(8*h + c); ac = CA + 4*c
            lq.wait([("c", c)])
            a(f"v_mfma_f32_16x16x32_bf16 v[{ac}:{ac+3}], v[{d}:{d+3}], v[{w}:{w+3}], 0")
            a(f"v_mfma_f32_16x16x32_bf16 v[{ac}:{ac+3}], v[{d+4}:{d+7}], v[{w+4}:{w+7}], v[{ac}:{ac+3}]")
            if c + 4 < 8: cread(c + 4)
        for c in range(4): cread(c)
        for c in range(8): mf(c)
        for c in range(8):
            ac = CA + 4*c
            for o in sigmul_ops(ac, ac, ac, CT + (c % 2)*4): a(o)
        for r in range(4):
            for e in range(4):
                a(f"v_cvt_pk_bf16_f32 v{CP+4*r+e}, v{CA+8*e+r}, v{CA+8*e+4+r}")
            a(f"s_mov_b32 s3, {r*16384}")
            vq.issue(f"buffer_store_dwordx4 v[{CP+4*r}:{CP+4*r+3}], v14, s[40:43], s3 offen offset:{1024*h} sc1", ("S", h))
        stamp(6 + 3*h)
    a("s_barrier")
    stamp(5)
    conv_half(0)
    toep(2)
    flag(0)
    toep(3)
    a("s_waitcnt lgkmcnt(0)")
    a("s_barrier")
    stamp(8)
    conv_half(1)
    flag(1)
    a("s_cmp_lg_u32 s18, 0")
    a("s_cbranch_scc1 L_lnopoll")
    poll(39, 4, False, 121, 64, 33, "L_pollB")
    a.label("L_lnopoll")
    stamp(11)
    a("s_barrier")
    a("s_branch L_fin")

    a.label("L_compute")
    role[0] = "C"
    a("s_waitcnt lgkmcnt(0)")
    build_srds1(); build_srds2()
    for i in range(4): a(f"v_mov_b32 v{252+i}, 0")
    a(f"v_mov_b32 v15, {CNT}")
    a("ds_write_b128 v15, v[252:255]")
    if CPF == 2:
        a("s_getpc_b64 s[78:79]")
        a.label("L_pc2")
        a("s_sub_u32 s78, s78, L_pc2-L_start")
        a("s_subb_u32 s79, s79, 0")
        a("v_lshlrev_b32 v251, 7, v0")
        a("v_min_u32 v251, L_end-L_start, v251")
        a("global_load_dword v252, v251, s[78:79]")
    if codepf and CPF == 1:
        a("s_cmp_lg_u32 s48, 1")
        a("s_cbranch_scc1 L_nopf")
        a("s_getpc_b64 s[78:79]")
        a.label("L_pc")
        a("s_sub_u32 s78, s78, L_pc-L_start")
        a("s_subb_u32 s79, s79, 0")
        a("s_lshr_b32 s3, s2, 3")
        a("s_lshl_b32 s3, s3, 10")
        a("v_lshlrev_b32 v251, 7, v2")
        a("v_add_u32 v251, s3, v251")
        a("v_min_u32 v251, L_end-L_start, v251")
        a("s_mov_b64 exec, 0xff")
        a("global_load_dword v252, v251, s[78:79]")
        a("s_mov_b64 exec, -1")
        a.label("L_nopf")
    a("s_lshr_b32 s60, s48, 1          ; wr")
    a("s_and_b32 s61, s48, 1           ; wc")
    a("s_mul_i32 s3, s60, 144")
    a("v_add_u32 v7, s3, v6")
    a("v_lshrrev_b32 v8, 1, v6")
    a("v_xor_b32 v8, v8, v4")
    a("v_lshlrev_b32 v8, 4, v8")
    a("v_lshl_add_u32 v8, v7, 7, v8")
    a("v_xor_b32 v9, 64, v8")
    a("v_lshrrev_b32 v7, 2, v6            ; i>>2")
    a("v_and_b32 v10, 1, v4")
    a("v_lshl_add_u32 v10, v10, 2, v7     ; w")
    a("v_lshlrev_b32 v10, 5, v10")
    a("v_and_b32 v11, 3, v6")
    a("v_lshl_add_u32 v10, v11, 3, v10    ; + (i&3)*8")
    a("v_lshl_add_u32 v7, v4, 3, v7       ; 8g + (i>>2)")
    a("v_lshl_add_u32 v224, v7, 8, v10")
    for t in range(1, 8): a(f"v_xor_b32 v{224+t}, {32*t}, v224")
    a("s_lshl_b32 s3, s61, 5")
    a("v_xor_b32 v10, s3, v224             ; t = wc")
    a(f"v_add_u32 v10, {WB}, v10")
    a("v_xor_b32 v11, 64, v10             ; a1: t^2")
    a("v_xor_b32 v12, 128, v10            ; b0: t^4")
    a("v_xor_b32 v13, 192, v10            ; b1: t^6")
    a(f"v_mov_b32 v15, {CNT}")
    a("v_mov_b32 v5, 1")
    a("s_lshr_b32 s3, s18, 1")
    a("s_lshl_b32 s3, s3, 2")
    a("v_add_u32 v3, s3, v4")
    a("v_lshlrev_b32 v3, 1, v3")
    a("v_xor_b32 v3, v3, v6            ; c8")
    a("v_lshlrev_b32 v3, 4, v3")
    a("s_lshl_b32 s3, s18, 2")
    a("v_add_u32 v7, s3, v4")
    a("v_lshl_add_u32 v3, v7, 10, v3")
    a("s_lshl_b32 s3, s19, 7            ; cb*256")
    a("v_add_u32 v3, s3, v3")
    a("s_lshl_b32 s74, s18, 10")
    a("s_lshl_b32 s3, s61, 4")
    a("v_add_u32 v7, s3, v6")
    a(f"v_mul_u32_u24 v7, {HTS}, v7")
    a("v_lshl_add_u32 v7, v4, 3, v7")
    a("s_mul_i32 s3, s60, 288")
    a(f"s_add_u32 s3, s3, {HT}")
    a("v_add_u32 v14, s3, v7")
    a("s_and_b32 s60, s49, 1             ; hf")
    a("s_lshr_b32 s61, s49, 1            ; cb")
    a("s_lshl_b32 s3, s60, 2")
    a("s_add_u32 s3, s3, s48")
    a("s_lshl_b32 s59, s3, 15")
    a("s_lshl_b32 s75, s50, 18")
    a("s_add_u32 s3, s59, s75")
    a("v_lshlrev_b32 v232, 4, v2")
    a("v_add_u32 v232, s3, v232")
    a("v_add_u32 v233, 16384, v232")
    for j in range(8):
        a(f"s_add_u32 s3, s19, {j}")
        a("s_and_b32 s3, s3, 7")
        a(f"s_lshl_b32 s{62+j}, s3, 11")
    a(f"s_mul_i32 s3, s50, {GSTR}")
    a(f"s_add_u32 s3, s3, {FLAG_OFF}")
    a("v_and_b32 v7, 7, v2")
    a("v_lshlrev_b32 v234, 4, v7")
    a("v_add_u32 v234, s3, v234")
    a("s_lshl_b32 s3, s50, 3")
    a("v_add_u32 v248, s3, v7")
    a("v_lshrrev_b32 v249, 1, v7")
    a(f"v_mul_u32_u24 v249, {HTS}, v249")
    a("v_and_b32 v7, 1, v7")
    a("v_lshl_add_u32 v249, v7, 3, v249")
    a(f"v_add_u32 v249, {MBX}, v249")
    a("s_lshl_b32 s3, s48, 13")
    a(f"s_add_u32 s3, s3, {OST}")
    a("v_lshrrev_b32 v235, 1, v4")
    a("v_xor_b32 v235, v235, v6")
    a("v_lshlrev_b32 v235, 4, v235")
    a("v_and_b32 v7, 1, v4")
    a("v_lshl_add_u32 v235, v7, 3, v235")
    a("v_lshl_add_u32 v235, v6, 8, v235")
    a("v_add_u32 v235, s3, v235")
    for T_ in range(1, 8): a(f"v_xor_b32 v{235+T_}, {32*T_}, v235")
    a("v_xor_b32 v243, v6, v4")
    a("v_lshlrev_b32 v243, 4, v243")
    a("v_lshl_add_u32 v243, v4, 8, v243")
    a("v_add_u32 v243, s3, v243")
    for n in range(1, 4): a(f"v_xor_b32 v{243+n}, {64*n}, v243")
    a("s_lshl_b32 s75, s61, 8")
    a("s_add_u32 s3, s59, s75")
    a("v_lshlrev_b32 v247, 4, v6")
    a("v_lshl_add_u32 v247, v4, 10, v247")
    a("v_add_u32 v247, s3, v247")
    ACC = 16; AR = 160; NA = 8; BR = 192
    def acc(rt, c): b = ACC + (rt*4 + c)*4; return f"v[{b}:{b+3}]"
    def areg(n): b = AR + (n % NA)*4; return f"v[{b}:{b+3}]"
    def breg(kk, c, h=None):
        b = BR + (kk % 2)*16 + c*4
        if h is None: return f"v[{b}:{b+3}]"
        return f"v[{b+2*h}:{b+2*h+1}]"
    lq = LQ(a)
    NSTEP = 144
    def readA(n):
        s, r = divmod(n % NSTEP if n < NSTEP else n - 18, 18); ks, rt = divmod(r, 9)
        lq.issue(f"ds_read_b128 {areg(n)}, v{8+ks} offset:{rt*2048}", ("A", n))
    def readB(kk, c):
        ks = kk % 2
        for h in range(2):
            lq.issue(f"ds_read_b64_tr_b16 {breg(kk,c,h)}, v{10+c} offset:{ks*8192 + h*1024}", ("B", kk, c))
    def switch_slot(s):
        d = (slot_of(s) - slot_of(s-1)) * SLOT
        for r in range(8, 14):
            if d > 0: a(f"v_add_u32 v{r}, {d}, v{r}")
            else: a(f"v_subrev_u32 v{r}, {-d}, v{r}")
    PD = 6; BARP = 4
    stamp(0)
    a("s_waitcnt lgkmcnt(0)")
    a("s_barrier")
    stamp(1)
    for c in range(4): readB(0, c)
    for n in range(4): readA(n)
    nextA = 4
    for n in range(NSTEP):
        s, r = divmod(n, 18); ks, rt = divmod(r, 9)
        kk = s*2 + ks
        if r == 18 - BARP and s < 7:
            lq.waitall()
            a("s_barrier")
            switch_slot(s + 1)
            if probe == ("C", 100 + s + 1): a("s_memrealtime s[84:85]")
            encst(100 + s + 1)
            if s + 1 in (4, 5, 7) and not G2ST: stamp({4: 2, 5: 3, 7: 4}[s+1])
        lim_stage = s + 1 if r >= 18 - BARP else s
        def canA(m): return m < NSTEP and m // 18 <= lim_stage and m < n + NA
        pend = []
        if ks == 0 and 2 <= rt <= 5: pend.append(("B", kk+1, rt-2))
        if ks == 1 and s < 7 and r >= 18 - BARP and r < 18 - BARP + 2:
            o = (r - (18 - BARP)) * 2
            pend.append(("B", kk+1, o)); pend.append(("B", kk+1, o+1))
        cnt = 0
        while canA(nextA) and nextA <= n + PD + (1 if (r >= 9 or s == 7) else 0) and cnt < 2:
            pend.append(("A", nextA)); nextA += 1; cnt += 1
        need = [("A", n)] + ([("B", kk, c) for c in range(4)] if rt == 0 else [])
        lq.wait(need)
        cs = (0, 2) if (DEFER and s == 7) else (0, 1, 2, 3)
        for ci, c in enumerate(cs):
            cin = "0" if kk == 0 else acc(rt, c)
            a(f"v_mfma_f32_16x16x32_bf16 {acc(rt,c)}, {areg(n)}, {breg(kk,c)}, {cin}")
            rem = len(cs) - ci
            k = (len(pend) + rem - 1) // rem if pend else 0
            for _ in range(k):
                p = pend.pop(0)
                if p[0] == "A": readA(p[1])
                else: readB(p[1], p[2])
        if r == 18 - BARP - 1:
            assert nextA >= min(NSTEP, (s+1)*18), (n, nextA)
    stamp(5)
    def glu(j):
        def wr(rt):
            av = ACC + (rt*4 + j)*4
            lq.issue(f"ds_write_b64 v14, v[{av}:{av+1}] offset:{j*32*HTS + rt*32}", ("w", j, rt))
        for rt in range(9):
            av = ACC + (rt*4 + j)*4; bv = ACC + (rt*4 + 2 + j)*4
            if j == 1 and rt == W2AT: w2p(range(16, 30), 3)
            for o in sigmul_ops(bv, bv, av, bv): a(o)
            a(f"v_cvt_pk_bf16_f32 v{av}, v{bv}, v{bv+1}")
            a(f"v_cvt_pk_bf16_f32 v{av+1}, v{bv+2}, v{bv+3}")
            if not LATEW[j]: wr(rt)
        if LATEW[j]:
            for rt in range(9): wr(rt)
        lq.waitall()
    a("s_nop 3")
    glu(0)
    stamp(6)
    a("s_barrier")
    if DEFER:
        nextA = NSTEP + 6
        for n in range(NSTEP, NSTEP + 18):
            ks, rt = divmod(n - NSTEP, 9); kk = 14 + ks
            lq.wait([("A", n)])
            for c in (1, 3):
                a(f"v_mfma_f32_16x16x32_bf16 {acc(rt,c)}, {areg(n)}, {breg(kk,c)}, {acc(rt,c)}")
                if nextA < NSTEP + 18 and nextA < n + NA: readA(nextA); nextA += 1
            if n == NSTEP + 14:
                lq.waitall()
                a("s_mov_b64 exec, 1")
                lq.issue("ds_add_u32 v15, v5 offset:12", ("e0",))
                a("s_mov_b64 exec, -1")
        a("s_nop 3")
    assert not DEFER
    vq = VQ(a)
    stamp(7)
    lq.issue("ds_read_b64 v[250:251], v249", ("mb",))
    glu(1)
    stamp(8)
    a("s_barrier")
    stamp(9)
    w2p([30, 31], 3)
    a(f"s_setprio {PR[1]}")
    a("s_cmp_lg_u32 s48, 0")
    a("s_cbranch_scc1 L_waitgo")
    a(f"s_setprio {PR[0]}")
    poll(234, 0, True, 250, 28, 248, "L_pollA")
    a("ds_write_b32 v15, v5 offset:8")
    a("s_branch L_go")
    a.label("L_waitgo")
    spin_lds(15, 8, 7, 1, "L_wg", sleep=1)
    a.label("L_go")
    a("s_waitcnt lgkmcnt(0)")
    stamp(10)
    A2 = 96; NA2 = 8; B2 = 160; NB2 = 8; AC2 = 32
    vq = VQ(a)
    def loadA(P):
        h, j = divmod(P, 8)
        for r2 in range(2):
            b = A2 + (P % NA2)*8 + 4*r2
            vq.issue(f"buffer_load_dwordx4 v[{b}:{b+3}], v{232+r2}, s[40:43], s{62+j} offen offset:{h*1024} sc1", P)
    lq = LQ(a)
    def readB2(f):
        P, T_ = divmod(f, 8)
        ad = w2addr(P)
        if P == 1: a(f"v_add_u32 v{16+T_}, 65536, v{224+T_}")
        reg = 224 + T_ if ad < 65536 else 16 + T_
        ad %= 65536
        b = B2 + (f % NB2)*4
        for h in range(2):
            lq.issue(f"ds_read_b64_tr_b16 v[{b+2*h}:{b+2*h+1}], v{reg} offset:{ad + h*1024}", ("B", f))
    for P in range(6): loadA(P)
    nextL = 6
    BD = 6
    for f in range(BD): readB2(f)
    a("s_setprio 0")
    for P in range(16):
        if P == X3P:
            a("s_barrier")
            stamp(12)
        vq.wait(P)
        if P == 0: stamp(11)
        if G2ST and P in (2, 4, 5, 8, 9, 10, 12, 14): stamp({2:0, 4:1, 5:2, 8:3, 9:4, 10:5, 12:6, 14:7}[P])
        for T_ in range(8):
            f = P*8 + T_
            lq.wait([("B", f)])
            b = B2 + (f % NB2)*4
            for r2 in range(2):
                ab = A2 + (P % NA2)*8 + 4*r2
                ac = AC2 + (r2*8 + T_)*4
                cin = "0" if P == 0 else f"v[{ac}:{ac+3}]"
                a(f"v_mfma_f32_16x16x32_bf16 v[{ac}:{ac+3}], v[{b}:{b+3}], v[{ab}:{ab+3}], {cin}")
                if r2 == 0 and f + BD < 128: readB2(f + BD)
            if T_ % 2 == 0 and nextL < 16 and nextL < P + NA2 and (nextL < 8 or P >= X3P):
                loadA(nextL); nextL += 1
    stamp(13)
    a("s_nop 3")
    PK = 96; RB = 128
    lq = LQ(a)
    def ostore(n):
        if n: a(f"v_add_u32 v247, 4096, v247")
        lq.wait([("r", n)])
        a(f"buffer_store_dwordx4 v[{RB+4*n}:{RB+4*n+3}], v247, s[36:39], 0 offen {outflag}")
    for r2 in range(2):
        for T_ in range(8):
            ac = AC2 + (r2*8 + T_)*4; p = PK + (r2*8 + T_)*2
            a(f"v_cvt_pk_bf16_f32 v{p}, v{ac}, v{ac+1}")
            a(f"v_cvt_pk_bf16_f32 v{p+1}, v{ac+2}, v{ac+3}")
            if r2 == 1 and T_ >= 3 and T_ < 7: ostore(T_ - 3)
            lq.issue(f"ds_write_b64 v{235+T_}, v[{p}:{p+1}] offset:{r2*4096}", ("w", r2, T_))
        for n in range(4*r2, 4*r2+4):
            lq.issue(f"ds_read_b128 v[{RB+4*n}:{RB+4*n+3}], v{243+n%4} offset:{n*1024}", ("r", n))
    for n in range(4, 8): ostore(n)
    if probe:
        a("s_waitcnt vmcnt(0) lgkmcnt(0)")
        if enc and enc[0] == "blk":
            a("s_mov_b32 s92, 0")
            a.label("L_blk")
            a("s_memtime s[94:95]")
            a("s_waitcnt lgkmcnt(0)")
            for i in range(enc[2]): a(f"v_pk_mul_f32 v[{32+2*(i%16)}:{33+2*(i%16)}], v[{64+2*(i%16)}:{65+2*(i%16)}], s[76:77]")
            a("s_memtime s[96:97]")
            a("s_waitcnt lgkmcnt(0)")
            a(f"s_cmp_lg_u32 s92, {enc[1]}")
            a("s_cbranch_scc1 L_blk2")
            a("s_sub_u32 s3, s96, s94")
            a("s_lshr_b32 s3, s3, 2")
            a("s_add_u32 s84, s84, s3")
            a.label("L_blk2")
            a("s_add_u32 s92, s92, 1")
            a("s_cmp_lt_u32 s92, 2")
            a("s_cbranch_scc1 L_blk")
        elif enc:
            a("s_sub_u32 s3, s90, s88")
            if enc[0] == "cyc": a("s_lshr_b32 s3, s3, 2")
            else: a("s_lshl_b32 s3, s3, 1")
            a("s_add_u32 s84, s84, s3")
        a.label("L_spin")
        a("s_memrealtime s[86:87]")
        a("s_waitcnt lgkmcnt(0)")
        a("s_sub_u32 s3, s86, s84")
        a("s_cmp_lt_i32 s3, 3000")
        a("s_cbranch_scc1 L_spin")
    a.label("L_fin")
    if stamps:
        a("s_waitcnt vmcnt(0)")
        a("s_memtime s[20:21]")
        a("s_memrealtime s[22:23]")
        a("s_waitcnt lgkmcnt(0)")
        a("s_cmp_lg_u32 s18, 0")
        a("s_cbranch_scc1 L_end")
        a("s_lshl_b32 s3, s2, 8")
        a("s_lshl_b32 s24, s48, 5")
        a("s_add_u32 s3, s3, s24")
        a(f"s_add_u32 s3, s3, {STAMP_OFF}")
        a("v_mov_b32 v25, s3")
        a("s_mov_b64 exec, 1")
        regs = [84, 22, 20] + SREGS
        for i, r in enumerate(regs):
            if i >= 2: a(f"s_sub_u32 s{r}, s{r}, s82")
            a(f"v_mov_b32 v20, s{r}")
            a(f"buffer_store_dword v20, v25, s[40:43], 0 offen offset:{4*i}")
    a.label("L_end")
    a("s_endpgm")
    return wrap_single(a.text(), 256, 512, 163840)

if __name__ == "__main__":
    open("k8.s", "w").write(gen(False))
    open("k8_st.s", "w").write(gen(True))
    P = ("C", 99)
    open("k8_r0.s", "w").write(gen(False, probe=P))
    open("k8_t1.s", "w").write(gen(False, probe=P, enc=("cyc", 1, 101)))
    for b in range(1, 7):
        open(f"k8_t{b+1}.s", "w").write(gen(False, probe=P, enc=("cyc", 100+b, 101+b)))
```
